```python
import torch

def _softmax(x, axis=-1):
    return torch.softmax(x, dim=axis)
def _gelu(x):
    return torch.nn.functional.gelu(x, approximate="tanh")
def _silu(x):
    return torch.nn.functional.silu(x)
def _sigmoid(x):
    return torch.sigmoid(x)
def _layernorm(x, axis=-1, eps=1e-5):
    m = x.mean(dim=axis, keepdim=True)
    v = x.var(dim=axis, keepdim=True, unbiased=False)
    return (x - m) / torch.sqrt(v + eps)
def _scatter_add(tgt, idx, src, axis=0):
    return tgt.clone().index_add_(axis, idx, src)
def _segment_sum(src, seg, n):
    out = torch.zeros((n,) + src.shape[1:], dtype=src.dtype)
    return out.index_add_(0, seg, src)
def _pad(x, pw):
    flat = tuple(v for pair in reversed(pw) for v in pair)
    return torch.nn.functional.pad(x, flat)

kernel_name = 'parallel_sum__ssm_conv_h3__mixer_s_mlp__prompt'

def setup_inputs():

    _w = (lambda a: (lambda t: t.to(torch.bfloat16) if t.is_floating_point() else t)(torch.as_tensor(a)))
    def _A_setup():
        B, S, D = 1, 2048, 512
        ks = 4
        return {
            "q": _w((lambda *s: torch.randn(*s, dtype=torch.bfloat16) * 0.05)(B, S, D)),
            "k": _w((lambda *s: torch.randn(*s, dtype=torch.bfloat16) * 0.8)(B, S, D)),
            "v": _w((lambda *s: torch.randn(*s, dtype=torch.bfloat16) * 0.8)(B, S, D)),
            "shift_k": _w((lambda *s: torch.randn(*s, dtype=torch.bfloat16) * 0.8)(D, ks) * 0.5),
            "ssm_k": _w((lambda *s: torch.randn(*s, dtype=torch.bfloat16) * 1.6)(D, S) * (1.0 / S ** 0.5)),
            "ssm_D": _w((lambda *s: torch.randn(*s, dtype=torch.bfloat16) * 0.8)(D)),
        }
    _A_in = _A_setup()

    def _B_setup():
        B, S, D, F = 1, 2048, 512, 1792
        return {
            "x":  _w((lambda *s: torch.randn(*s, dtype=torch.bfloat16) * 0.05)(B, S, D)),
            "w1": _w((lambda *s: torch.randn(*s, dtype=torch.bfloat16) * 3.2)(D, D) * (D ** -0.5)),
            "w2": _w((lambda *s: torch.randn(*s, dtype=torch.bfloat16) * 3.2)(D, D) * (D ** -0.5)),
            "w3": _w((lambda *s: torch.randn(*s, dtype=torch.bfloat16) * 3.2)(D, F) * (D ** -0.5)),
            "w4": _w((lambda *s: torch.randn(*s, dtype=torch.bfloat16) * 1.6)(F, D) * (F ** -0.5)),
        }
    _B_in = _B_setup()

    return {
        "A_q": _A_in["q"],
        "A_k": _A_in["k"],
        "A_v": _A_in["v"],
        "A_shift_k": _A_in["shift_k"],
        "A_ssm_k": _A_in["ssm_k"],
        "A_ssm_D": _A_in["ssm_D"],
        "B_x": _B_in["x"],
        "B_w1": _B_in["w1"],
        "B_w2": _B_in["w2"],
        "B_w3": _B_in["w3"],
        "B_w4": _B_in["w4"],
    }

def reference(A_q, A_k, A_v, A_shift_k, A_ssm_k, A_ssm_D, B_x, B_w1, B_w2, B_w3, B_w4):
    def _A_ref(q, k, v, shift_k, ssm_k, ssm_D):
        B, S, D = q.shape
        ks = shift_k.shape[-1]
        k_pad = _pad(k, ((0, 0), (ks - 1, 0), (0, 0)))
        k_shift = torch.zeros_like(k)
        for t in range(ks):
            k_shift = k_shift + k_pad[:, t:t + S, :] * shift_k[:, ks - 1 - t][None, None, :]
        kv = k_shift * v
        L = 2 * S
        kv_pad = _pad(kv, ((0, 0), (0, S), (0, 0)))
        kf_pad = _pad(ssm_k, ((0, 0), (0, S)))
        kv_f = (lambda x, axes=(-2,-1): torch.fft.rfft2(x.float(), dim=axes))(kv_pad[:, None, :, :], axes=(1, 2))
        kf_f = (lambda x, axes=(-2,-1): torch.fft.rfft2(x.float(), dim=axes))(kf_pad[:, None, :], axes=(1, 2))
        kf_f = (lambda x, *d: x.permute(*d))(kf_f, 1, 2, 0)
        y_f = kv_f * kf_f[None, :, :, :]
        y = (lambda x, s, axes=(-2,-1): torch.fft.irfft2(x, s=s, dim=axes).to(torch.bfloat16))(y_f, (1, L), axes=(1, 2))[:, 0, :S, :]
        y = y + kv * ssm_D[None, None, :]
        return q * y

    def _B_ref(x, w1, w2, w3, w4):
        B, S, D = x.shape
        h = _gelu(_layernorm(x, axis=-1) @ w1)
        c = D // 4
        g0 = _pad(h[:, :, 0*c:1*c], ((0, 0), (1, 0), (0, 0)))[:, :S, :]
        g1 = _pad(h[:, :, 1*c:2*c], ((0, 0), (0, 1), (0, 0)))[:, 1:, :]
        g2 = _pad(h[:, :, 2*c:3*c], ((0, 0), (2, 0), (0, 0)))[:, :S, :]
        g3 = _pad(h[:, :, 3*c:   ], ((0, 0), (0, 2), (0, 0)))[:, 2:, :]
        hs = torch.concatenate([g0, g1, g2, g3], axis=-1) @ w2
        x1 = x + hs
        h2 = _gelu(_layernorm(x1, axis=-1) @ w3) @ w4
        return x1 + h2

    x = A_q
    xn = _layernorm(x, axis=-1)
    return x + _A_ref(xn, A_k, A_v, A_shift_k, A_ssm_k, A_ssm_D) + _B_ref(xn, B_w1, B_w2, B_w3, B_w4)
```

```python
import re

REG_RE = re.compile(r"^(-|\|)?(?:abs\()?([vas])(?:\[(\d+):(\d+)\]|(\d+))\)?\|?$")
TRANS = ("v_exp_f32", "v_log_f32", "v_rcp_f32", "v_rsq_f32", "v_sqrt_f32", "v_sin_f32", "v_cos_f32")


def regs_of(op):
    op = op.strip()
    if op in ("vcc",):
        return {("s", "vcc")}
    if op in ("exec", "exec_lo", "exec_hi"):
        return {("s", "exec")}
    if op == "m0":
        return {("s", "m0")}
    m = REG_RE.match(op)
    if not m:
        return set()
    f = m.group(2)
    if m.group(3) is not None:
        return {(f, i) for i in range(int(m.group(3)), int(m.group(4)) + 1)}
    return {(f, int(m.group(5)))}


def split_ops(rest):
    out, depth, cur = [], 0, ""
    for ch in rest:
        if ch == "[":
            depth += 1
        if ch == "]":
            depth -= 1
        if ch == "," and depth == 0:
            out.append(cur.strip())
            cur = ""
        else:
            cur += ch
    if cur.strip():
        out.append(cur.strip())
    return out


class Ins:
    def __init__(self, text):
        self.text = text
        t = text.split(";")[0].strip()
        self.label = t.endswith(":")
        self.directive = t.startswith(".")
        self.empty = not t
        self.mn = ""
        self.ops = []
        self.w = set()
        self.r = set()
        self.kind = "other"
        if self.label or self.directive or self.empty:
            return
        parts = t.split(None, 1)
        self.mn = mn = parts[0]
        rest = parts[1] if len(parts) > 1 else ""
        ops = split_ops(rest)
        mods = ""
        if ops:
            last = ops[-1].split(None, 1)
            ops[-1] = last[0]
            mods = last[1] if len(last) > 1 else ""
        self.ops, self.mods = ops, mods
        R = [regs_of(o) for o in ops]
        allr = lambda lst: set().union(*lst) if lst else set()
        if mn.startswith("v_mfma"):
            self.kind = "mfma"
            self.w = R[0]
            self.ra, self.rb, self.rc = R[1], R[2], R[3]
            self.r = R[1] | R[2] | R[3]
            self.passes = 8 if "32x32" in mn else 4
        elif mn.startswith("v_cmp"):
            self.kind = "valu"
            self.w = R[0]
            self.r = allr(R[1:])
        elif mn.startswith("v_readfirstlane") or mn.startswith("v_readlane"):
            self.kind = "valu"
            self.w = R[0]
            self.r = allr(R[1:])
            self.lanerd = True
        elif mn.startswith("v_permlane"):
            self.kind = "valu"
            self.w = R[0] | R[1]
            self.r = R[0] | R[1]
            self.perm = True
        elif mn.startswith("v_"):
            self.kind = "valu"
            self.w = R[0]
            self.r = allr(R[1:])
            if mn.startswith(("v_fmac", "v_mac", "v_dot2c", "v_writelane")):
                self.r |= R[0]
            if mn.startswith(("v_add_co", "v_sub_co", "v_addc_co", "v_subb_co")):
                self.w = R[0] | R[1]
                self.r = allr(R[2:])
            if mn.startswith("v_cndmask") and len(ops) == 3:
                self.r |= {("s", "vcc")}
            self.dpp = ("quad_perm" in mods or "row_" in mods or "wave_" in mods or mn.endswith("_dpp"))
        elif mn.startswith("ds_"):
            self.kind = "ds"
            if mn.startswith(("ds_read", "ds_bpermute", "ds_permute", "ds_swizzle")):
                self.w = R[0]
                self.r = allr(R[1:])
            else:
                self.r = allr(R)
        elif mn.startswith(("buffer_", "global_")):
            self.kind = "vmem"
            is_lds = " lds" in (" " + mods) or "load_lds" in mn
            self.is_lds = is_lds
            if mn in ("buffer_wbl2", "buffer_inv"):
                pass
            elif "load" in mn and not is_lds:
                self.w = R[0]
                self.r = allr(R[1:])
            elif "atomic" in mn and "sc0" in mods:
                self.w = R[0]
                self.r = allr(R)
            else:
                self.r = allr(R)
                if is_lds:
                    self.r |= {("s", "m0")}
            self.wide_store = "store" in mn and ("x4" in mn or "x3" in mn)
            if self.wide_store:
                self.sdata = R[0] if mn.startswith("buffer_") else R[1]
        elif mn.startswith("s_"):
            self.kind = "salu"
            if mn.startswith(("s_cmp", "s_cbranch", "s_branch", "s_waitcnt", "s_barrier", "s_nop", "s_sleep",
                              "s_endpgm", "s_setprio", "s_bitcmp")):
                self.r = allr(R)
            else:
                self.w = R[0] if R else set()
                self.r = allr(R[1:])
                if "saveexec" in mn:
                    self.w |= {("s", "exec")}

    def states(self):
        if self.label or self.directive or self.empty:
            return 0
        if self.mn == "s_nop":
            return int(self.ops[0], 0) + 1
        return 1


def need_between(p, c):
    n = 0
    pv = p.kind == "valu"
    if pv:
        wv = {x for x in p.w if x[0] in "va"}
        ws = {x for x in p.w if x[0] == "s"}
        if c.kind == "mfma" and wv & c.r:
            n = max(n, 2)
        if c.kind == "valu":
            if getattr(c, "perm", False) and wv & c.r:
                n = max(n, 2)
            if getattr(c, "dpp", False) and wv & c.r:
                n = max(n, 2)
            if getattr(c, "lanerd", False) and wv & c.r:
                n = max(n, 1)
            if p.mn.replace("_e32", "").replace("_e64", "") in TRANS and wv & (c.r | c.w) and \
                    c.mn.replace("_e32", "").replace("_e64", "") not in TRANS:
                n = max(n, 1)
            if p.mn.replace("_e32", "").replace("_e64", "") in TRANS and wv & c.r:
                n = max(n, 1)
            if ws & c.r:
                n = max(n, 4 if getattr(c, "lanerd", False) else 2)
        if c.kind == "vmem" and ws & c.r:
            n = max(n, 5)
        if c.kind == "salu" and ws & c.r:
            n = max(n, 1)
    if pv and p.mn.startswith("v_dot"):
        wv = {x for x in p.w if x[0] in "va"}
        if c.kind == "valu" and c.mn == p.mn:
            srcab = regs_of(c.ops[1]) | regs_of(c.ops[2])
            if wv & srcab:
                n = max(n, 3)
        elif wv & (c.r | c.w):
            n = max(n, 3)
    if p.kind == "mfma":
        big = p.passes == 8
        if c.kind == "mfma":
            if p.w & (c.ra | c.rb):
                n = max(n, 12 if big else 8)
            if p.w & c.rc and not (p.w == c.rc and p.passes == c.passes):
                n = max(n, 10 if big else 6)
            if p.w & c.w and not (p.w == c.w):
                n = max(n, 10 if big else 6)
        elif c.kind in ("valu", "ds", "vmem"):
            if p.w & (c.r | c.w):
                n = max(n, 12 if big else 8)
            if c.kind == "valu" and p.rc & c.w:
                n = max(n, 7 if big else 3)
    if p.kind == "salu" and ("s", "m0") in p.w and c.kind == "vmem" and getattr(c, "is_lds", False):
        n = max(n, 1)
    if p.kind == "salu" and ("s", "exec") in p.w and c.kind == "valu" and (getattr(c, "dpp", False) or getattr(c, "perm", False)):
        n = max(n, 1)
    if p.kind == "vmem" and getattr(p, "wide_store", False):
        if c.kind == "valu" and p.sdata & c.w:
            n = max(n, 2)
        elif c.kind in ("ds", "vmem", "mfma") and p.sdata & c.w:
            n = max(n, 1)
    return n


class Asm:
    WINDOW = 14

    def __init__(self):
        self.lines = []
        self.vm_seq = 0
        self.lg_seq = 0
        self.nlabel = 0

    def __call__(self, text):
        for l in text.split("\n"):
            l = l.strip()
            if l:
                self.lines.append(l)
        return self

    def label(self, base):
        self.nlabel += 1
        return "L_%s_%d" % (base, self.nlabel)

    def vm(self, text):
        self(text)
        self.vm_seq += 1
        return self.vm_seq

    def vm_wait(self, token):
        n = self.vm_seq - token
        self("s_waitcnt vmcnt(%d)" % min(n, 63))

    def vm_drain(self):
        self("s_waitcnt vmcnt(0)")

    def ds(self, text):
        self(text)
        self.lg_seq += 1
        return self.lg_seq

    def ds_wait(self, token):
        n = self.lg_seq - token
        self("s_waitcnt lgkmcnt(%d)" % min(n, 15))

    def ds_drain(self):
        self("s_waitcnt lgkmcnt(0)")

    def finish(self):
        ins = [Ins(l) for l in self.lines]
        out = []
        hist = []
        nops = 0
        for idx, c in enumerate(ins):
            if c.label:
                out.append(c)
                continue
            if c.directive or c.empty:
                out.append(c)
                continue
            need = 0
            dist = 0
            for p in reversed(hist):
                nb = need_between(p, c)
                if nb > dist:
                    need = max(need, nb - dist)
                dist += p.states()
                if dist > self.WINDOW:
                    break
            if c.mn.startswith(("s_cbranch", "s_branch")):
                dist = 0
                for p in reversed(hist):
                    worst = 0
                    if p.kind == "mfma":
                        worst = 0
                    elif p.kind == "valu":
                        worst = 2
                        if any(x[0] == "s" for x in p.w):
                            worst = 5
                    if worst > dist + 1:
                        need = max(need, worst - dist - 1)
                    dist += p.states()
                    if dist > self.WINDOW:
                        break
            while need > 0:
                k = min(need, 16)
                nop = Ins("s_nop %d" % (k - 1))
                out.append(nop)
                hist.append(nop)
                need -= k
                nops += 1
            out.append(c)
            hist.append(c)
            if len(hist) > 40:
                hist = hist[-40:]
        self.nops_inserted = nops
        txt = []
        for c in out:
            if c.label or c.directive:
                txt.append(c.text)
            else:
                txt.append("    " + c.text)
        return "\n".join(txt) + "\n"
```

```python
import sys
from emit import Asm

NAME = "parallel_sum__ssm_conv_h3__mixer_s_mlp__prompt_kernel"
DIAG = False

WS_EPOCH = 0x0
WS_FKV = 0x1000
WS_FH = 0x2000
WS_FX1 = 0x3000
WS_FH3 = 0x4000
WS_FY = 0x5000
WS_G = 0x100000
WS_X1 = 0x300000
WS_ST = 0x500000
WS_KVT = 0x600000
WS_YT = 0x800000
WS_H3 = 0xA00000
WS_DIAG = 0x1200000
WS_SIZE = 0x1400000

LA = 0
LB = 65536
LC = 131072
LDS_SIZE = 163840
LC_KVT = LC
LC_STAT = LC + 9216
LC_RED = LC + 10240
LC_Y = LC + 10240
CV_H = LB
CV_HCH = 4 * 4160
CV_U = LB + 2 * CV_HCH
CV_RED = LB + 2 * CV_HCH + 2 * 4608
CV_YS = LB

S_W = 3
S_I, S_J, S_WM, S_WN = 4, 5, 6, 7
R_Q, R_K, R_V, R_W1, R_W2, R_W3, R_W4, R_OUT, R_WS, R_SK, R_T = 8, 12, 16, 20, 24, 28, 32, 36, 40, 44, 48
S_E, S_E2 = 52, 53
S_SHK, S_SSD = 54, 86
T0, T1, T2, T3, T4, T5, T6, T7 = 88, 89, 90, 91, 92, 93, 94, 95
U0, U1, U2, U3, U4, U5 = 72, 73, 74, 75, 76, 77
S_TO = 96
S_STAMP = 56
S_PC = 98


def srd(r):
    return "s[%d:%d]" % (r, r + 3)


def vr(a, n=1):
    return "v%d" % a if n == 1 else "v[%d:%d]" % (a, a + n - 1)


def ar(a, n=1):
    return "a%d" % a if n == 1 else "a[%d:%d]" % (a, a + n - 1)


V_TID, V_LANE, V_C, V_G, V_L16 = 0, 1, 2, 3, 4
V_X = 8
V_XN = 16
V_X1 = 24
V_ONES = 32
V_P = 36
V_T = 40

GELU_C1 = -2.0 * 1.4426950408889634 * 0.7978845608028654
GELU_C2 = GELU_C1 * 0.044715


def f32hex(x):
    import struct
    return "0x%08x" % struct.unpack("<I", struct.pack("<f", x))[0]


class Gen:
    def __init__(self, diag=False):
        self.a = Asm()
        self.diag = diag
        self.nstamp = 0

    def stamp(self):
        if not self.diag:
            return
        a = self.a
        k = self.nstamp
        self.nstamp += 1
        assert k < 16
        a("s_memtime s[100:101]")
        a("s_waitcnt lgkmcnt(0)")
        a("s_mov_b32 s%d, s100" % (S_STAMP + k))

    def barrier(self):
        self.a("s_barrier")

    def signal(self, flag_off_code):
        a = self.a
        a("s_waitcnt vmcnt(0)")
        a("s_barrier")
        skip = a.label("sig")
        a("s_cmp_lg_u32 s%d, 0" % S_W)
        a("s_cbranch_scc1 %s" % skip)
        a(flag_off_code)
        a("v_mov_b32 v%d, s%d" % (V_T, S_E))
        a("v_mov_b32 v%d, s%d" % (V_T + 1, S_E2))
        a("v_mov_b32 v%d, s%d" % (V_T + 2, T0))
        a("s_mov_b64 exec, 1")
        a("buffer_store_dwordx2 %s, v%d, %s, 0 offen sc0 sc1" % (vr(V_T, 2), V_T + 2, srd(R_WS)))
        a("s_mov_b64 exec, -1")
        a("%s:" % skip)

    def wait_flags(self, base_code, nlanes_mask_code, vt):
        a = self.a
        skip = a.label("wskip")
        loop = a.label("wloop")
        done = a.label("wdone")
        a("s_cmp_lg_u32 s%d, 0" % S_W)
        a("s_cbranch_scc1 %s" % skip)
        a(base_code)
        a("v_lshlrev_b32 v%d, 3, v%d" % (vt, V_LANE))
        a("v_add_u32 v%d, s%d, v%d" % (vt, T0, vt))
        a(nlanes_mask_code)
        a("s_mov_b64 exec, s[%d:%d]" % (T2, T3))
        a("s_mov_b32 s%d, 0" % T1)
        a("%s:" % loop)
        a("buffer_load_dwordx2 %s, v%d, %s, 0 offen sc1" % (vr(vt + 2, 2), vt, srd(R_WS)))
        a("s_waitcnt vmcnt(0)")
        a("v_cmp_eq_u32 vcc, s%d, v%d" % (S_E, vt + 2))
        a("v_cmp_eq_u32 s[%d:%d], s%d, v%d" % (T4, T5, S_E2, vt + 3))
        a("s_nop 1")
        a("s_and_b64 vcc, vcc, s[%d:%d]" % (T4, T5))
        a("s_cmp_eq_u64 vcc, exec")
        a("s_cbranch_scc1 %s" % done)
        a("s_add_u32 s%d, s%d, 1" % (T1, T1))
        a("s_sleep 1")
        a("s_cmp_lt_u32 s%d, 0x8000" % T1)
        a("s_cbranch_scc1 %s" % loop)
        a("s_mov_b32 s%d, 1" % S_TO)
        a("%s:" % done)
        a("s_mov_b64 exec, -1")
        a("%s:" % skip)
        a("s_barrier")

    def prologue(self):
        a = self.a
        a("s_cmp_ge_u32 s2, 256")
        a("s_cbranch_scc1 L_end")
        a("s_load_dwordx16 s[56:71], s[0:1], 0")
        a("s_load_dwordx8 s[72:79], s[0:1], 64")
        a("s_load_dwordx4 s[80:83], s[0:1], 96")
        a("v_and_b32 v%d, 63, v0" % V_LANE)
        a("v_lshrrev_b32 v%d, 6, v0" % V_T)
        a("v_and_b32 v%d, 15, v0" % V_C)
        a("v_readfirstlane_b32 s%d, v%d" % (S_W, V_T))
        a("v_lshrrev_b32 v%d, 4, v%d" % (V_G, V_LANE))
        a("v_lshlrev_b32 v%d, 4, v%d" % (V_L16, V_LANE))
        a("s_and_b32 s%d, s2, 7" % T0)
        a("s_lshl_b32 s%d, s%d, 2" % (T0, T0))
        a("s_lshr_b32 s%d, s2, 6" % T1)
        a("s_add_u32 s%d, s%d, s%d" % (S_I, T0, T1))
        a("s_bfe_u32 s%d, s2, 0x30003" % S_J)
        a("s_lshr_b32 s%d, s%d, 1" % (S_WM, S_W))
        a("s_and_b32 s%d, s%d, 1" % (S_WN, S_W))
        a("s_mov_b32 s%d, 0" % S_TO)
        for k in range(4):
            a("v_mov_b32 v%d, 0x3f803f80" % (V_ONES + k))
        a("s_waitcnt lgkmcnt(0)")

        def mk(r, p, n):
            a("s_mov_b32 s%d, s%d" % (r, p))
            a("s_and_b32 s%d, s%d, 0xffff" % (r + 1, p + 1))
            a("s_mov_b32 s%d, 0x%x" % (r + 2, n))
            a("s_mov_b32 s%d, 0x20000" % (r + 3))
        mk(R_WS, 82, WS_SIZE)
        a("s_load_dword s%d, s[82:83], 0x%x" % (S_E, WS_EPOCH))
        mk(R_Q, 56, 2097152)
        mk(R_K, 58, 2097152)
        mk(R_V, 60, 2097152)
        mk(R_W1, 70, 524288)
        mk(R_W2, 72, 524288)
        mk(R_W3, 74, 1835008)
        mk(R_W4, 76, 1835008)
        mk(R_OUT, 78, 2097152)
        mk(R_SK, 64, 2097152)
        mk(R_T, 62, 4096)
        a("s_mov_b32 s%d, s66" % S_SSD)
        a("s_mov_b32 s%d, s67" % (S_SSD + 1))
        a("s_mov_b32 s84, s82")
        a("s_mov_b32 s85, s83")
        a("s_waitcnt lgkmcnt(0)")
        a("s_add_u32 s%d, s%d, 1" % (S_E, S_E))
        a("s_xor_b32 s%d, s%d, 0xa5c3f00f" % (S_E2, S_E))
        self.stamp()

    def phase_kv(self):
        a = self.a
        vcp, vtb, vpos, vpos2, vneg, vsh = V_T, V_T + 1, V_T + 2, V_T + 3, V_T + 4, V_T + 5
        K = V_T + 8
        Vv = K + 12
        W = Vv + 8
        a("v_and_b32 v%d, 31, v0" % vcp)
        a("v_lshrrev_b32 v%d, 5, v0" % vtb)
        a("s_lshl_b32 s%d, s%d, 16" % (T0, S_I))
        a("s_lshl_b32 s%d, s%d, 7" % (T1, S_J))
        a("s_add_u32 s%d, s%d, s%d" % (T0, T0, T1))
        a("v_lshlrev_b32 v%d, 13, v%d" % (vpos, vtb))
        a("v_lshl_add_u32 v%d, v%d, 2, v%d" % (vpos, vcp, vpos))
        a("v_add_u32 v%d, s%d, v%d" % (vpos, T0, vpos))
        a("v_add_u32 v%d, 0x1000, v%d" % (vpos2, vpos))
        a("v_subrev_u32 v%d, 0xc00, v%d" % (vneg, vpos))
        a("v_cmp_gt_u32 vcc, 0x2000, v%d" % vpos)
        a("v_mov_b32 v%d, 0x80000000" % vsh)
        a("v_cndmask_b32 v%d, v%d, v%d, vcc" % (vneg, vneg, vsh))
        a("s_lshl_b32 s%d, s%d, 9" % (T1, S_J))
        a("v_lshlrev_b32 v%d, 4, v%d" % (vsh, vcp))
        a("v_add_u32 v%d, s%d, v%d" % (vsh, T1, vsh))
        tW = a.vm("buffer_load_dwordx4 %s, v%d, %s, 0 offen" % (vr(W, 4), vsh, srd(R_T)))
        for r in range(3):
            a.vm("buffer_load_dword v%d, v%d, %s, 0 offen offset:%d nt" % (K + r, vneg, srd(R_K), 1024 * r))
        for r in range(8):
            a.vm("buffer_load_dword v%d, v%d, %s, 0 offen offset:%d nt" % (K + 3 + r, vpos if r < 4 else vpos2, srd(R_K), 1024 * (r & 3)))
        for r in range(8):
            tV = a.vm("buffer_load_dword v%d, v%d, %s, 0 offen offset:%d nt" % (Vv + r, vpos if r < 4 else vpos2, srd(R_V), 1024 * (r & 3)))
        self.kv = dict(K=K, Vv=Vv, W=W, vcp=vcp, vtb=vtb, tok=tV)

    def phase_kv_compute(self):
        a = self.a
        d = self.kv
        K, Vv, W, vcp, vtb = d["K"], d["Vv"], d["W"], d["vcp"], d["vtb"]
        KF = W + 4
        WF = KF + 12
        O = WF + 4
        P = O + 8
        VA = P + 4
        a.vm_wait(d["tok"])
        a("v_sub_u32 v%d, 7, v%d" % (VA, vtb))
        a("v_lshlrev_b32 v%d, 4, v%d" % (VA, VA))
        a("v_mul_u32_u24 v%d, 288, v%d" % (VA + 1, vcp))
        a("v_add_u32 v%d, v%d, v%d" % (VA, VA, VA + 1))
        a("v_add_u32 v%d, %d, v%d" % (VA, LC_KVT, VA))
        for ch in range(2):
            for r in range(11):
                if ch == 0:
                    a("v_lshlrev_b32 v%d, 16, v%d" % (KF + r, K + r))
                else:
                    a("v_and_b32 v%d, 0xffff0000, v%d" % (KF + r, K + r))
            for q in range(2):
                a("v_lshlrev_b32 v%d, 16, v%d" % (WF + 2 * q, W + 2 * ch + q))
                a("v_and_b32 v%d, 0xffff0000, v%d" % (WF + 2 * q + 1, W + 2 * ch + q))
            for t in range(8):
                a("v_mul_f32 v%d, v%d, v%d" % (O + t, WF + 3, KF + t))
            for jj in (2, 1, 0):
                for t in range(8):
                    a("v_fmac_f32 v%d, v%d, v%d" % (O + t, WF + jj, KF + t + 3 - jj))
            for t in range(8):
                if ch == 0:
                    a("v_lshlrev_b32 v%d, 16, v%d" % (KF + t, Vv + t))
                else:
                    a("v_and_b32 v%d, 0xffff0000, v%d" % (KF + t, Vv + t))
            for t in range(8):
                a("v_mul_f32 v%d, v%d, v%d" % (O + t, O + t, KF + t))
            for q in range(4):
                a("v_cvt_pk_bf16_f32 v%d, v%d, v%d" % (P + q, O + 7 - 2 * q, O + 6 - 2 * q))
            a.ds("ds_write_b128 v%d, %s offset:%d" % (VA, vr(P, 4), 144 * ch))
        a.ds_drain()
        self.barrier()
        a("v_lshrrev_b32 v%d, 3, v0" % VA)
        a("v_and_b32 v%d, 7, v0" % (VA + 1))
        a("v_lshlrev_b32 v%d, 4, v%d" % (VA + 1, VA + 1))
        a("v_mul_u32_u24 v%d, 144, v%d" % (VA + 2, VA))
        a("v_add3_u32 v%d, v%d, v%d, s%d" % (VA + 2, VA + 2, VA + 1, T7))
        a.lines.pop()
        a("s_mov_b32 s%d, %d" % (T0, LC_KVT))
        a("v_add3_u32 v%d, v%d, v%d, s%d" % (VA + 2, VA + 2, VA + 1, T0))
        a.ds("ds_read_b128 %s, v%d" % (vr(O, 4), VA + 2))
        t2 = a.ds("ds_read_b128 %s, v%d offset:%d" % (vr(O + 4, 4), VA + 2, 32 * 144))
        a("s_lshl_b32 s%d, s%d, 18" % (T0, S_J))
        a("s_lshl_b32 s%d, s%d, 7" % (T1, S_I))
        a("s_sub_u32 s%d, s%d, s%d" % (T0, T0, T1))
        a("s_add_u32 s%d, s%d, 0x%x" % (T0, T0, WS_KVT + 3968))
        a("v_lshlrev_b32 v%d, 12, v%d" % (VA, VA))
        a("v_add_u32 v%d, v%d, v%d" % (VA, VA, VA + 1))
        a("s_add_u32 s%d, s%d, 0x20000" % (T1, T0))
        a.ds_wait(t2)
        a.vm("buffer_store_dwordx4 %s, v%d, %s, s%d offen sc0 sc1" % (vr(O, 4), VA, srd(R_WS), T0))
        a.vm("buffer_store_dwordx4 %s, v%d, %s, s%d offen sc0 sc1" % (vr(O + 4, 4), VA, srd(R_WS), T1))

    def signal_kv(self):
        self.signal("s_lshl_b32 s%d, s%d, 8\n s_lshl_b32 s%d, s%d, 3\n s_add_u32 s%d, s%d, s%d\n s_add_u32 s%d, s%d, 0x%x"
                    % (T0, S_J, T1, S_I, T0, T0, T1, T0, T0, WS_FKV))

    def w_voff(self, v, rowstride):
        a = self.a
        a("v_lshrrev_b32 v%d, 3, v%d" % (v, V_LANE))
        a("v_mul_u32_u24 v%d, %d, v%d" % (v, rowstride, v))
        a("v_bfe_u32 v%d, v%d, 4, 1" % (v + 1, V_LANE))
        a("v_lshlrev_b32 v%d, 1, v%d" % (v + 1, v + 1))
        a("s_and_b32 s%d, s%d, 1" % (T0, S_W))
        a("s_lshl_b32 s%d, s%d, 2" % (T0, T0))
        a("v_add_u32 v%d, s%d, v%d" % (v + 1, T0, v + 1))
        a("v_and_b32 v%d, 7, v%d" % (v + 2, V_LANE))
        a("v_xor_b32 v%d, v%d, v%d" % (v + 1, v + 1, v + 2))
        a("v_lshl_add_u32 v%d, v%d, 4, v%d" % (v, v + 1, v))

    def dma(self, voff, r, soff, ldsaddr_code, sc=""):
        a = self.a
        a("s_mov_b32 m0, %s" % ldsaddr_code)
        return a.vm("buffer_load_dwordx4 v%d, %s, %s offen %s lds" % (voff, srd(r), soff, sc))

    def dma_w64(self, r, voff, lds):
        a = self.a
        a("s_lshl_b32 s%d, s%d, 7" % (T0, S_J))
        a("s_lshl_b32 s%d, s%d, 13" % (T1, S_W))
        a("s_add_u32 s%d, s%d, s%d" % (T0, T0, T1))
        a("s_lshl_b32 s%d, s%d, 10" % (T1, S_W))
        a("s_add_u32 s%d, s%d, %d" % (T1, T1, lds))
        tok = None
        for tau in range(16):
            tok = self.dma(voff, r, "s%d" % T0, "s%d" % T1)
            if tau < 15:
                a("s_add_u32 s%d, s%d, 0x8000" % (T0, T0))
                a("s_add_u32 s%d, s%d, 4096" % (T1, T1))
        return tok

    def tr_rowpart(self, v):
        a = self.a
        a("v_lshrrev_b32 v%d, 2, v%d" % (v, V_C))
        a("v_lshl_add_u32 v%d, v%d, 3, v%d" % (v, V_G, v))
        a("v_lshlrev_b32 v%d, 7, v%d" % (v, v))
        a("v_and_b32 v%d, 1, v%d" % (v + 1, V_C))
        a("v_lshl_add_u32 v%d, v%d, 3, v%d" % (v, v + 1, v))
        a("v_bfe_u32 v%d, v%d, 3, 1" % (v + 1, V_C))
        a("v_lshlrev_b32 v%d, 1, v%d" % (v + 1, v + 1))
        a("v_and_b32 v%d, 1, v%d" % (v + 2, V_G))
        a("v_lshl_add_u32 v%d, v%d, 2, v%d" % (v + 1, v + 2, v + 1))
        a("v_bfe_u32 v%d, v%d, 1, 1" % (v + 2, V_C))

    def tr_addr(self, dst, v, s_tile, base):
        a = self.a
        a("s_lshl_b32 s%d, s%d, 1" % (T0, s_tile))
        a("v_xor_b32 v%d, s%d, v%d" % (dst, T0, v + 1))
        a("v_add_u32 v%d, v%d, v%d" % (dst, dst, v + 2))
        a("v_lshl_add_u32 v%d, v%d, 4, v%d" % (dst, dst, v))
        if isinstance(base, int):
            a("v_add_u32 v%d, %d, v%d" % (dst, base, dst))
        else:
            a("v_add_u32 v%d, %s, v%d" % (dst, base, dst))

    def w64_to_agpr(self, lds):
        a = self.a
        v = V_T
        self.tr_rowpart(v)
        for ntp in range(2):
            a("s_lshl_b32 s%d, s%d, 1" % (T1, S_WN))
            a("s_add_u32 s%d, s%d, %d" % (T1, T1, ntp))
            self.tr_addr(v + 4 + ntp, v, T1, lds)
        for ks in range(16):
            for ntp in range(2):
                for h in range(2):
                    a.ds("ds_read_b64_tr_b16 %s, v%d offset:%d" % (ar((ntp * 16 + ks) * 4 + 2 * h, 2), v + 4 + ntp, ks * 4096 + h * 512))
        a.ds_drain()

    def g1_issue(self):
        a = self.a
        vx, vw = V_T + 100, V_T + 104
        self.w_voff(vw, 1024)
        self.t_w1 = self.dma_w64(R_W1, vw, LB)
        a("v_lshrrev_b32 v%d, 3, v%d" % (vx, V_LANE))
        a("v_lshlrev_b32 v%d, 10, v%d" % (vx, vx))
        a("s_and_b32 s%d, s%d, 1" % (T0, S_W))
        a("s_lshl_b32 s%d, s%d, 2" % (T0, T0))
        a("v_add_u32 v%d, s%d, v%d" % (vx + 1, T0, V_G))
        a("v_and_b32 v%d, 7, v%d" % (vx + 2, V_LANE))
        a("v_xor_b32 v%d, v%d, v%d" % (vx + 1, vx + 1, vx + 2))
        a("v_lshl_add_u32 v%d, v%d, 4, v%d" % (vx, vx + 1, vx))
        a("s_lshl_b32 s%d, s%d, 16" % (T0, S_I))
        a("s_lshl_b32 s%d, s%d, 13" % (T1, S_W))
        a("s_add_u32 s%d, s%d, s%d" % (T0, T0, T1))
        a("s_lshl_b32 s%d, s%d, 10" % (T1, S_W))
        a("s_add_u32 s%d, s%d, %d" % (T1, T1, LA))
        for kc in range(8):
            for rr in range(2):
                a("s_add_u32 s%d, s%d, %d" % (T2, T0, kc * 128 + rr * 32768))
                a("s_add_u32 s%d, s%d, %d" % (T3, T1, kc * 8192 + rr * 4096))
                self.t_x = self.dma(vx, R_Q, "s%d" % T2, "s%d" % T3, "nt")

    def g1_stats(self):
        a = self.a
        v = V_T
        A0, D, SUM, SQ = v, v + 8, v + 4, v + 6
        a("v_lshrrev_b32 v%d, 2, v0" % (v + 1))
        a("v_lshlrev_b32 v%d, 7, v%d" % (A0, v + 1))
        a("v_and_b32 v%d, 3, v0" % (v + 2))
        a("v_lshl_add_u32 v%d, v%d, 14, v%d" % (A0, v + 2, A0))
        a("v_bfe_u32 v%d, v0, 3, 1" % (v + 3))
        a("v_lshl_add_u32 v%d, v%d, 2, v%d" % (v + 3, v + 3, v + 2))
        a("v_lshl_add_u32 v%d, v%d, 4, v%d" % (A0, v + 3, A0))
        if LA:
            a("v_add_u32 v%d, %d, v%d" % (A0, LA, A0))
        for k in range(4):
            a("v_mov_b32 v%d, 0" % (SUM + k))
        toks = []
        for i in range(8):
            a("v_xor_b32 v%d, %d, v%d" % (v + 3, i << 4, A0))
            toks.append(a.ds("ds_read_b128 %s, v%d" % (vr(D + 8 * i, 4), v + 3)))
            toks.append(a.ds("ds_read_b128 %s, v%d offset:8192" % (vr(D + 8 * i + 4, 4), v + 3)))
        for i in range(16):
            a.ds_wait(toks[i])
            for k in range(4):
                a("v_dot2_f32_bf16 v%d, v%d, v%d, v%d" % (SUM + (k & 1), D + 4 * i + k, V_ONES, SUM + (k & 1)))
                a("v_dot2_f32_bf16 v%d, v%d, v%d, v%d" % (SQ + (k & 1), D + 4 * i + k, D + 4 * i + k, SQ + (k & 1)))
        a("v_add_f32 v%d, v%d, v%d" % (SUM, SUM, SUM + 1))
        a("v_add_f32 v%d, v%d, v%d" % (SQ, SQ, SQ + 1))
        for perm in ("[1,0,3,2]", "[2,3,0,1]"):
            a("v_add_f32_dpp v%d, v%d, v%d quad_perm:%s row_mask:0xf bank_mask:0xf" % (SUM, SUM, SUM, perm))
            a("v_add_f32_dpp v%d, v%d, v%d quad_perm:%s row_mask:0xf bank_mask:0xf" % (SQ, SQ, SQ, perm))
        M, R1, SC, IS, T = D, D + 1, D + 2, D + 3, D + 4
        a("v_mul_f32 v%d, %s, v%d" % (M, f32hex(1.0 / 512), SUM))
        a("v_mul_f32 v%d, %s, v%d" % (T, f32hex(1.0 / 512), SQ))
        a("v_fma_f32 v%d, -v%d, v%d, v%d" % (T, M, M, T))
        a("v_max_f32 v%d, 0, v%d" % (T, T))
        a("v_add_f32 v%d, %s, v%d" % (T + 1, f32hex(1e-5), T))
        a("v_rsq_f32 v%d, v%d" % (R1, T + 1))
        a("v_mul_f32 v%d, v%d, v%d" % (T + 2, R1, R1))
        a("v_mul_f32 v%d, v%d, v%d" % (T + 2, T + 2, T))
        a("v_add_f32 v%d, %s, v%d" % (T + 2, f32hex(1e-5), T + 2))
        a("v_rsq_f32 v%d, v%d" % (T + 3, T + 2))
        a("v_mul_f32 v%d, v%d, v%d" % (SC, R1, T + 3))
        a("v_rcp_f32 v%d, v%d" % (IS, SC))
        a("v_lshlrev_b32 v%d, 4, v%d" % (v + 1, v + 1))
        a("v_add_u32 v%d, %d, v%d" % (v + 1, LC_STAT, v + 1))
        a("s_mov_b64 exec, 0x1111111111111111")
        a.lines.pop()
        a("s_mov_b32 s%d, 0x11111111" % T0)
        a("s_mov_b32 s%d, 0x11111111" % T1)
        a("s_mov_b64 exec, s[%d:%d]" % (T0, T1))
        a.ds("ds_write_b128 v%d, %s" % (v + 1, vr(M, 4)))
        a("s_mov_b64 exec, -1")
        a.ds_drain()

    def g1_xtile(self, ST):
        a = self.a
        v = V_T
        a("s_lshl_b32 s%d, s%d, 9" % (T0, S_WM))
        a("v_lshlrev_b32 v%d, 4, v%d" % (v, V_C))
        a("v_add_u32 v%d, s%d, v%d" % (v, T0, v))
        a("v_add_u32 v%d, %d, v%d" % (v, LC_STAT, v))
        a.ds("ds_read_b128 %s, v%d" % (vr(ST, 4), v))
        a.ds("ds_read_b128 %s, v%d offset:256" % (vr(ST + 4, 4), v))
        a("s_lshl_b32 s%d, s%d, 13" % (T0, S_J))
        a("s_lshl_b32 s%d, s%d, 12" % (T1, S_WM))
        a("s_add_u32 s%d, s%d, s%d" % (T0, T0, T1))
        a("s_add_u32 s%d, s%d, %d" % (T0, T0, LA))
        a("v_lshlrev_b32 v%d, 7, v%d" % (v + 1, V_C))
        a("v_add_u32 v%d, s%d, v%d" % (v + 1, T0, v + 1))
        a("v_and_b32 v%d, 1, v%d" % (v + 2, V_G))
        a("v_lshl_add_u32 v%d, v%d, 3, v%d" % (v + 1, v + 2, v + 1))
        a("v_lshrrev_b32 v%d, 1, v%d" % (v + 2, V_G))
        a("s_lshl_b32 s%d, s%d, 2" % (T1, S_WN))
        a("v_add_u32 v%d, s%d, v%d" % (v + 2, T1, v + 2))
        a("v_lshrrev_b32 v%d, 1, v%d" % (v + 3, V_C))
        for ntp in range(2):
            a("v_add_u32 v%d, %d, v%d" % (v + 4, 2 * ntp, v + 2))
            a("v_xor_b32 v%d, v%d, v%d" % (v + 4, v + 4, v + 3))
            a("v_lshl_add_u32 v%d, v%d, 4, v%d" % (v + 5 + ntp, v + 4, v + 1))
            for mtp in range(2):
                a.ds("ds_read_b64 %s, v%d offset:%d" % (vr(V_X + (mtp * 2 + ntp) * 2, 2), v + 5 + ntp, mtp * 2048))
        a.ds_drain()
        t = v + 8
        for mtp in range(2):
            for ntp in range(2):
                b = (mtp * 2 + ntp) * 2
                for d in range(2):
                    a("v_lshlrev_b32 v%d, 16, v%d" % (t, V_X + b + d))
                    a("v_and_b32 v%d, 0xffff0000, v%d" % (t + 1, V_X + b + d))
                    a("v_sub_f32 v%d, v%d, v%d" % (t, t, ST + 4 * mtp))
                    a("v_sub_f32 v%d, v%d, v%d" % (t + 1, t + 1, ST + 4 * mtp))
                    a("v_mul_f32 v%d, v%d, v%d" % (t, t, ST + 4 * mtp + 1))
                    a("v_mul_f32 v%d, v%d, v%d" % (t + 1, t + 1, ST + 4 * mtp + 1))
                    a("v_cvt_pk_bf16_f32 v%d, v%d, v%d" % (V_XN + b + d, t, t + 1))

    def gelu_elems(self, regs, C1, C2, SIG, tmp):
        a = self.a
        n = len(regs)
        z = [tmp + k for k in range(n)]
        for k, r in enumerate(regs):
            a("v_mul_f32 v%d, v%d, v%d" % (z[k], r, r))
        for k, r in enumerate(regs):
            a("v_fma_f32 v%d, v%d, v%d, v%d" % (z[k], z[k], C2, C1))
        for k, r in enumerate(regs):
            a("v_mul_f32 v%d, v%d, v%d" % (z[k], z[k], r))
        for k, r in enumerate(regs):
            a("v_exp_f32 v%d, v%d" % (z[k], z[k]))
        for k, r in enumerate(regs):
            a("v_fma_f32 v%d, v%d, v%d, v%d" % (z[k], z[k], SIG, SIG))
        for k, r in enumerate(regs):
            a("v_rcp_f32 v%d, v%d" % (z[k], z[k]))
        for k, r in enumerate(regs):
            a("v_mul_f32 v%d, v%d, v%d" % (r, r, z[k]))

    def to_frag(self, P):
        a = self.a
        a("v_permlane32_swap_b32 v%d, v%d" % (P, P + 2))
        a("v_permlane32_swap_b32 v%d, v%d" % (P + 1, P + 3))
        a("v_permlane16_swap_b32 v%d, v%d" % (P, P + 2))
        a("v_permlane16_swap_b32 v%d, v%d" % (P + 1, P + 3))

    def g1_main(self):
        a = self.a
        ST = V_T + 90
        self.g1_xtile(ST)
        ACC = V_T
        CS = V_T + 16
        FR = V_T + 24
        AD = V_T + 40
        for k in range(24):
            a("v_mov_b32 v%d, 0" % (ACC + k))
        a("s_lshl_b32 s%d, s%d, 12" % (T0, S_WM))
        a("v_lshlrev_b32 v%d, 7, v%d" % (AD + 2, V_C))
        a("v_add_u32 v%d, s%d, v%d" % (AD + 2, T0, AD + 2))
        a("v_lshrrev_b32 v%d, 1, v%d" % (AD + 3, V_C))
        for h in range(2):
            a("v_add_u32 v%d, %d, v%d" % (AD + h, 4 * h, V_G))
            a("v_xor_b32 v%d, v%d, v%d" % (AD + h, AD + h, AD + 3))
            a("v_lshl_add_u32 v%d, v%d, 4, v%d" % (AD + h, AD + h, AD + 2))
            if LA:
                a("v_add_u32 v%d, %d, v%d" % (AD + h, LA, AD + h))

        def reads(ks):
            t = None
            for mtp in range(2):
                t = a.ds("ds_read_b128 %s, v%d offset:%d" % (vr(FR + (ks & 1) * 8 + mtp * 4, 4), AD + (ks & 1), (ks >> 1) * 8192 + mtp * 2048))
            return t
        tok = reads(0)
        for ks in range(16):
            nxt = reads(ks + 1) if ks < 15 else None
            for ntp in range(2):
                a("v_mfma_f32_16x16x32_bf16 %s, %s, %s, %s" % (vr(CS + 4 * ntp, 4), ar((ntp * 16 + ks) * 4, 4), vr(V_ONES, 4), vr(CS + 4 * ntp, 4)))
            a.ds_wait(tok)
            for mtp in range(2):
                for ntp in range(2):
                    acc = vr(ACC + (mtp * 2 + ntp) * 4, 4)
                    a("v_mfma_f32_16x16x32_bf16 %s, %s, %s, %s" % (acc, ar((ntp * 16 + ks) * 4, 4), vr(FR + (ks & 1) * 8 + mtp * 4, 4), acc))
            tok = nxt
        K = V_T + 44
        for mtp in range(2):
            s = ST + 4 * mtp
            a("v_mul_f32 v%d, %s, v%d" % (K + 3 * mtp, f32hex(GELU_C1), s + 2))
            a("v_mul_f32 v%d, v%d, v%d" % (K + 3 * mtp + 1, s + 2, s + 2))
            a("v_mul_f32 v%d, v%d, v%d" % (K + 3 * mtp + 1, K + 3 * mtp + 1, s + 2))
            a("v_mul_f32 v%d, %s, v%d" % (K + 3 * mtp + 1, f32hex(GELU_C2), K + 3 * mtp + 1))
        TMP = V_T + 52
        P = V_T + 64
        for mtp in range(2):
            s = ST + 4 * mtp
            regs = []
            for ntp in range(2):
                for r in range(4):
                    x = ACC + (mtp * 2 + ntp) * 4 + r
                    a("v_fma_f32 v%d, -v%d, v%d, v%d" % (x, s, CS + 4 * ntp + r, x))
                    regs.append(x)
            self.gelu_elems(regs, K + 3 * mtp, K + 3 * mtp + 1, s + 3, TMP)
            for ntp in range(2):
                x = ACC + (mtp * 2 + ntp) * 4
                a("v_cvt_pk_bf16_f32 v%d, v%d, v%d" % (P + 4 * mtp + 2 * ntp, x, x + 1))
                a("v_cvt_pk_bf16_f32 v%d, v%d, v%d" % (P + 4 * mtp + 2 * ntp + 1, x + 2, x + 3))
            self.to_frag(P + 4 * mtp)
        AD = V_T + 72
        a("s_lshr_b32 s%d, s%d, 1" % (T0, S_J))
        a("s_lshr_b32 s%d, s%d, 1" % (T1, T0))
        a("s_add_u32 s%d, s%d, 1" % (T1, T1))
        a("s_and_b32 s%d, s%d, 1" % (T0, T0))
        a("s_sub_u32 s%d, 0, s%d" % (T2, T1))
        a("s_cmp_eq_u32 s%d, 0" % T0)
        a("s_cselect_b32 s%d, s%d, s%d" % (T2, T1, T2))
        a("s_lshl_b32 s%d, s%d, 6" % (T3, S_I))
        a("s_lshl_b32 s%d, s%d, 5" % (T4, S_WM))
        a("s_add_u32 s%d, s%d, s%d" % (T3, T3, T4))
        a("s_add_u32 s%d, s%d, s%d" % (T3, T3, T2))
        a("s_lshl_b32 s%d, s%d, 1" % (T4, S_J))
        a("s_add_u32 s%d, s%d, s%d" % (T4, T4, S_WN))
        a("s_lshl_b32 s%d, s%d, 12" % (T4, T4))
        a("s_add_u32 s%d, s%d, 0x%x" % (T4, T4, WS_G))
        a("v_lshlrev_b32 v%d, 8, v%d" % (AD + 4, V_G))
        a("v_add_u32 v%d, s%d, v%d" % (AD + 4, T4, AD + 4))
        a("v_mov_b32 v%d, 0x80000000" % (AD + 5))

        def img_addr(dst, tp):
            a("v_lshrrev_b32 v%d, 6, v%d" % (dst, tp))
            a("v_lshlrev_b32 v%d, 16, v%d" % (dst, dst))
            a("v_bfe_u32 v%d, v%d, 4, 2" % (AD + 6, tp))
            a("v_lshl_add_u32 v%d, v%d, 10, v%d" % (dst, AD + 6, dst))
            a("v_and_b32 v%d, 15, v%d" % (AD + 6, tp))
            a("v_lshl_add_u32 v%d, v%d, 4, v%d" % (dst, AD + 6, dst))
            a("v_add_u32 v%d, v%d, v%d" % (dst, dst, AD + 4))
            a("v_cmp_gt_u32 vcc, 0x800, v%d" % tp)
            a("v_cndmask_b32 v%d, v%d, v%d, vcc" % (dst, AD + 5, dst))
        for mtp in range(2):
            a("v_add_u32 v%d, s%d, v%d" % (AD + 2, T3, V_C))
            if mtp:
                a("v_add_u32 v%d, 16, v%d" % (AD + 2, AD + 2))
            img_addr(AD + mtp, AD + 2)
            a.vm("buffer_store_dwordx4 %s, v%d, %s, 0 offen sc0 sc1" % (vr(P + 4 * mtp, 4), AD + mtp, srd(R_WS)))
        Z = V_T + 80
        for k in range(4):
            a("v_mov_b32 v%d, 0" % (Z + k))
        a("s_sub_u32 s%d, 0x800, s%d" % (T5, T1))
        a("s_cmp_eq_u32 s%d, 0" % T0)
        a("s_cselect_b32 s%d, 0, s%d" % (T5, T5))
        a("s_mul_i32 s%d, s%d, 31" % (T6, T0))
        a("s_cmp_eq_u32 s%d, s%d" % (T6, S_I))
        a("s_cselect_b32 s%d, s%d, 0" % (T1, T1))
        a("s_cmp_eq_u32 s%d, s%d" % (T0, S_WM))
        a("s_cselect_b32 s%d, s%d, 0" % (T1, T1))
        a("v_add_u32 v%d, s%d, v%d" % (AD + 2, T5, V_C))
        img_addr(AD + 3, AD + 2)
        a("v_cmp_gt_u32 vcc, s%d, v%d" % (T1, V_C))
        a("v_cndmask_b32 v%d, v%d, v%d, vcc" % (AD + 3, AD + 5, AD + 3))
        a.vm("buffer_store_dwordx4 %s, v%d, %s, 0 offen sc0 sc1" % (vr(Z, 4), AD + 3, srd(R_WS)))

    def signal_h(self):
        self.signal("s_add_u32 s%d, s%d, 1\n s_lshl_b32 s%d, s%d, 6\n s_lshl_b32 s%d, s%d, 3\n s_add_u32 s%d, s%d, s%d\n s_add_u32 s%d, s%d, 0x%x"
                    % (T0, S_I, T0, T0, T1, S_J, T0, T0, T1, T0, T0, WS_FH))

    def conv(self):
        a = self.a
        v = V_T
        a("s_lshl_b32 s%d, s%d, 6" % (T0, S_J))
        a("s_lshl_b32 s%d, s%d, 1" % (T1, S_I))
        a("s_add_u32 s%d, s%d, s%d" % (T0, T0, T1))
        a("s_add_u32 s%d, s%d, s%d" % (T0, T0, S_WM))
        a("s_lshl_b32 s%d, s%d, 12" % (U0, T0))
        a("s_mul_i32 s%d, s%d, %d" % (U1, S_WM, CV_HCH))
        a("s_add_u32 s%d, s%d, %d" % (U1, U1, CV_H))
        for sp in range(2):
            a("s_lshl_b32 s%d, s%d, 1" % (T1, S_WN))
            a("s_add_u32 s%d, s%d, %d" % (T1, T1, sp))
            a("s_mul_i32 s%d, s%d, 4160" % (T2, T1))
            a("s_add_u32 s%d, s%d, s%d" % (T2, T2, U1))
            a("s_add_u32 s%d, s%d, 32" % (T2, T2))
            a("s_lshl_b32 s%d, s%d, 1" % (T1, T1))
            a("s_add_u32 s%d, s%d, s%d" % (T1, T1, U0))
            for u in range(4):
                self.dma(V_L16, R_SK, "s%d" % T1, "s%d" % T2, "nt")
                if u < 3:
                    a("s_add_u32 s%d, s%d, 1024" % (T1, T1))
                    a("s_add_u32 s%d, s%d, 1024" % (T2, T2))
        a("v_mov_b32 v%d, s%d" % (v, U0))
        th = a.vm("buffer_load_dwordx2 %s, v%d, %s, 0 offen" % (vr(v + 2, 2), v, srd(R_SK)))
        a("s_lshl_b32 s%d, s%d, 7" % (T0, S_J))
        a("s_lshl_b32 s%d, s%d, 2" % (T1, S_I))
        a("s_add_u32 s%d, s%d, s%d" % (T0, T0, T1))
        a("s_load_dword s%d, s[%d:%d], s%d" % (U2, S_SSD, S_SSD + 1, T0))
        self.wait_flags("s_lshl_b32 s%d, s%d, 8\n s_add_u32 s%d, s%d, 0x%x" % (T0, S_J, T0, T0, WS_FKV),
                        "s_mov_b32 s%d, -1\n s_mov_b32 s%d, 0" % (T2, T3), v + 8)
        a("s_lshl_b32 s%d, s%d, 11" % (T1, S_WN))
        a("s_add_u32 s%d, s%d, s%d" % (T0, U0, T1))
        a("s_add_u32 s%d, s%d, 0x%x" % (T0, T0, WS_KVT))
        a("s_mul_i32 s%d, s%d, 4608" % (U3, S_WM))
        a("s_add_u32 s%d, s%d, %d" % (U3, U3, CV_U))
        a("s_add_u32 s%d, s%d, s%d" % (T1, T1, U3))
        self.dma(V_L16, R_WS, "s%d" % T0, "s%d" % T1, "sc1")
        a("s_add_u32 s%d, s%d, 1024" % (T0, T0))
        a("s_add_u32 s%d, s%d, 1024" % (T1, T1))
        tu = self.dma(V_L16, R_WS, "s%d" % T0, "s%d" % T1, "sc1")
        Z = v + 12
        for k in range(4):
            a("v_mov_b32 v%d, 0" % (Z + k))
        a.vm_wait(th)
        a("v_lshlrev_b32 v%d, 16, v%d" % (v + 4, v + 2))
        a("v_alignbit_b32 v%d, v%d, v%d, 16" % (v + 5, v + 3, v + 2))
        a("v_mov_b32 v%d, 0" % (v + 18))
        a("v_mov_b32 v%d, 0" % (v + 19))
        a("v_cmp_eq_u32 vcc, 1, v%d" % V_LANE)
        a("v_cndmask_b32 v%d, v%d, v%d, vcc" % (v + 19, v + 19, v + 4))
        a("v_cmp_eq_u32 vcc, 2, v%d" % V_LANE)
        a("v_cndmask_b32 v%d, v%d, v%d, vcc" % (v + 19, v + 19, v + 2))
        a("v_cmp_eq_u32 vcc, 3, v%d" % V_LANE)
        a("v_cndmask_b32 v%d, v%d, v%d, vcc" % (v + 19, v + 19, v + 5))
        a("v_cndmask_b32 v%d, v%d, v%d, vcc" % (v + 18, v + 18, v + 4))
        a("v_mov_b32 v%d, 0" % (v + 16))
        a("v_mov_b32 v%d, 0" % (v + 17))
        a("v_mul_u32_u24 v%d, 4160, v%d" % (v + 6, V_LANE))
        a("v_add_u32 v%d, s%d, v%d" % (v + 6, U1, v + 6))
        a("v_add_u32 v%d, s%d, v%d" % (v + 7, U3, V_L16))
        a("v_add_u32 v%d, 4096, v%d" % (v + 7, v + 7))
        skip = a.label("cvfront")
        a("s_cmp_lg_u32 s%d, 0" % S_WN)
        a("s_cbranch_scc1 %s" % skip)
        a("s_mov_b64 exec, 15")
        a("ds_write_b128 v%d, %s" % (v + 6, vr(Z, 4)))
        a("ds_write_b128 v%d, %s offset:16" % (v + 6, vr(v + 16, 4)))
        a("s_mov_b32 exec_lo, -1")
        a("s_mov_b32 exec_hi, 0")
        a("ds_write_b128 v%d, %s" % (v + 7, vr(Z, 4)))
        a("s_mov_b64 exec, -1")
        a("%s:" % skip)
        a("s_waitcnt vmcnt(0) lgkmcnt(0)")
        a("s_lshl_b32 s%d, s%d, 16" % (T0, U2))
        a("s_and_b32 s%d, s%d, 0xffff0000" % (T1, U2))
        a("s_cmp_eq_u32 s%d, 0" % S_WM)
        a("s_cselect_b32 s%d, s%d, s%d" % (U2, T0, T1))
        self.barrier()
        ACC, AF, BF = v, v + 32, v + 64
        VA, VB = v + 96, v + 97
        a("v_add_u32 v%d, 1, v%d" % (VA, V_C))
        a("v_and_b32 v%d, 3, v%d" % (VB, VA))
        a("v_sub_u32 v%d, v%d, v%d" % (VA, VA, VB))
        a("v_lshl_add_u32 v%d, v%d, 3, v%d" % (VA, V_G, VA))
        a("v_lshlrev_b32 v%d, 1, v%d" % (VA, VA))
        a("v_mul_u32_u24 v%d, 4160, v%d" % (VB, VB))
        a("v_add_u32 v%d, v%d, v%d" % (VA, VA, VB))
        a("s_lshl_b32 s%d, s%d, 8" % (T0, S_WN))
        a("s_add_u32 s%d, s%d, s%d" % (T1, T0, U1))
        a("v_add_u32 v%d, s%d, v%d" % (VA, T1, VA))
        a("v_lshlrev_b32 v%d, 4, v%d" % (VB, V_G))
        a("v_lshlrev_b32 v%d, 5, v%d" % (VB + 1, V_C))
        a("v_sub_u32 v%d, v%d, v%d" % (VB, VB, VB + 1))
        a("s_add_u32 s%d, s%d, s%d" % (T1, T0, U3))
        a("s_add_u32 s%d, s%d, 480" % (T1, T1))
        a("v_add_u32 v%d, s%d, v%d" % (VB, T1, VB))
        for k in range(32):
            a("v_mov_b32 v%d, 0" % (ACC + k))

        def ldA(k):
            a("ds_read_b64 %s, v%d offset:%d" % (vr(AF + 4 * k, 2), VA, 512 * k))
            a("ds_read_b64 %s, v%d offset:%d" % (vr(AF + 4 * k + 2, 2), VA, 512 * k + 8))

        def ldB(p):
            a("ds_read_b128 %s, v%d offset:%d" % (vr(BF + 4 * p, 4), VB, 512 * (7 - p)))
        for k in range(8):
            ldA(k)
            ldB(7 - k)
        a("s_mov_b32 s%d, 0" % T0)
        loop = a.label("cvloop")
        a("%s:" % loop)
        a("v_add_u32 v%d, 64, v%d" % (VA, VA))
        a("v_add_u32 v%d, 64, v%d" % (VB, VB))
        for k in range(8):
            for p in range(7 - k, -1, -1):
                if k == 0:
                    a("s_waitcnt lgkmcnt(%d)" % min(15, 3 * p))
                acc = vr(ACC + 4 * (k + p), 4)
                a("v_mfma_f32_16x16x32_bf16 %s, %s, %s, %s" % (acc, vr(AF + 4 * k, 4), vr(BF + 4 * p, 4), acc))
            ldA(k)
            ldB(7 - k)
        a("s_add_u32 s%d, s%d, 1" % (T0, T0))
        a("s_cmp_lt_u32 s%d, 4" % T0)
        a("s_cbranch_scc1 %s" % loop)
        a("s_waitcnt lgkmcnt(0)")
        a("s_nop 7")
        VR = v + 98
        a("s_lshl_b32 s%d, s%d, 12" % (T0, S_W))
        a("s_add_u32 s%d, s%d, %d" % (T0, T0, CV_RED))
        a("v_add_u32 v%d, s%d, v%d" % (VR, T0, V_L16))
        a("s_xor_b32 s%d, s%d, 1" % (T1, S_W))
        a("s_lshl_b32 s%d, s%d, 12" % (T1, T1))
        a("s_add_u32 s%d, s%d, %d" % (T1, T1, CV_RED))
        a("v_add_u32 v%d, s%d, v%d" % (VR + 1, T1, V_L16))
        KEEP = v + 32
        l0, l1 = a.label("cvx0"), a.label("cvx1")
        a("s_cmp_lg_u32 s%d, 0" % S_WN)
        a("s_cbranch_scc1 %s" % l0)
        for q in range(4):
            a("ds_write_b128 v%d, %s offset:%d" % (VR, vr(ACC + 16 + 4 * q, 4), 1024 * q))
        for k in range(16):
            a("v_mov_b32 v%d, v%d" % (KEEP + k, ACC + k))
        a("s_branch %s" % l1)
        a("%s:" % l0)
        for q in range(4):
            a("ds_write_b128 v%d, %s offset:%d" % (VR, vr(ACC + 4 * q, 4), 1024 * q))
        for k in range(16):
            a("v_mov_b32 v%d, v%d" % (KEEP + k, ACC + 16 + k))
        a("%s:" % l1)
        a("s_waitcnt lgkmcnt(0)")
        self.barrier()
        OT = v
        for q in range(4):
            a.ds("ds_read_b128 %s, v%d offset:%d" % (vr(OT + 4 * q, 4), VR + 1, 1024 * q))
        KVR = v + 48
        a("v_lshlrev_b32 v%d, 5, v%d" % (VR + 2, V_C))
        a("v_lshl_add_u32 v%d, v%d, 3, v%d" % (VR + 2, V_G, VR + 2))
        a("s_lshl_b32 s%d, s%d, 11" % (T0, S_WN))
        a("s_sub_u32 s%d, s%d, s%d" % (T1, U3, T0))
        a("s_add_u32 s%d, s%d, %d" % (T1, T1, 4088 - 3 * 512))
        a("v_sub_u32 v%d, s%d, v%d" % (VR + 3, T1, VR + 2))
        for q in range(4):
            tk = a.ds("ds_read_b64 %s, v%d offset:%d" % (vr(KVR + 2 * q, 2), VR + 3, 512 * (3 - q)))
        a.ds_drain()
        a("s_lshl_b32 s%d, s%d, 12" % (T1, S_WM))
        a("s_add_u32 s%d, s%d, s%d" % (T1, T1, T0))
        a("s_add_u32 s%d, s%d, %d" % (T1, T1, CV_YS))
        a("v_add_u32 v%d, s%d, v%d" % (VR + 2, T1, VR + 2))
        t = v + 56
        for q in range(4):
            for r in range(4):
                a("v_add_f32 v%d, v%d, v%d" % (KEEP + 4 * q + r, KEEP + 4 * q + r, OT + 4 * q + r))
            d0, d1 = KVR + 2 * q, KVR + 2 * q + 1
            a("v_and_b32 v%d, 0xffff0000, v%d" % (t, d1))
            a("v_lshlrev_b32 v%d, 16, v%d" % (t + 1, d1))
            a("v_and_b32 v%d, 0xffff0000, v%d" % (t + 2, d0))
            a("v_lshlrev_b32 v%d, 16, v%d" % (t + 3, d0))
            for r in range(4):
                a("v_fma_f32 v%d, v%d, s%d, v%d" % (KEEP + 4 * q + r, t + r, U2, KEEP + 4 * q + r))
            a("v_cvt_pk_bf16_f32 v%d, v%d, v%d" % (t + 4, KEEP + 4 * q, KEEP + 4 * q + 1))
            a("v_cvt_pk_bf16_f32 v%d, v%d, v%d" % (t + 5, KEEP + 4 * q + 2, KEEP + 4 * q + 3))
            a.ds("ds_write_b64 v%d, %s offset:%d" % (VR + 2, vr(t + 4, 2), 512 * q))
        a.ds_drain()
        self.barrier()
        a("v_add_u32 v%d, s%d, v%d" % (VR, T1, V_L16))
        a.ds("ds_read_b128 %s, v%d" % (vr(OT, 4), VR))
        a.ds("ds_read_b128 %s, v%d offset:1024" % (vr(OT + 4, 4), VR))
        a("s_add_u32 s%d, s%d, s%d" % (T0, T0, U0))
        a("s_add_u32 s%d, s%d, 0x%x" % (T0, T0, WS_YT))
        a("s_add_u32 s%d, s%d, 1024" % (T1, T0))
        a.ds_drain()
        a.vm("buffer_store_dwordx4 %s, v%d, %s, s%d offen sc0 sc1" % (vr(OT, 4), V_L16, srd(R_WS), T0))
        a.vm("buffer_store_dwordx4 %s, v%d, %s, s%d offen sc0 sc1" % (vr(OT + 4, 4), V_L16, srd(R_WS), T1))

    def signal_y(self):
        self.signal("s_lshl_b32 s%d, s%d, 8\n s_lshl_b32 s%d, s%d, 3\n s_add_u32 s%d, s%d, s%d\n s_add_u32 s%d, s%d, 0x%x"
                    % (T0, S_J, T1, S_I, T0, T0, T1, T0, T0, WS_FY))

    def act_dma64(self, ws_off):
        a = self.a
        a("s_lshl_b32 s%d, s%d, 16" % (T0, S_I))
        a("s_lshl_b32 s%d, s%d, 10" % (T1, S_W))
        a("s_add_u32 s%d, s%d, s%d" % (T0, T0, T1))
        a("s_add_u32 s%d, s%d, 0x%x" % (T0, T0, ws_off))
        if LA:
            a("s_add_u32 s%d, s%d, %d" % (T1, T1, LA))
        toks = []
        for ks in range(16):
            toks.append(self.dma(V_L16, R_WS, "s%d" % T0, "s%d" % T1, "sc1"))
            if ks < 15:
                a("s_add_u32 s%d, s%d, 4096" % (T0, T0))
                a("s_add_u32 s%d, s%d, 4096" % (T1, T1))
        return toks

    def g2(self):
        a = self.a
        v = V_T
        vw = v + 104
        self.w_voff(vw, 1024)
        tw = self.dma_w64(R_W2, vw, LB)
        a.vm_wait(tw)
        self.barrier()
        self.w64_to_agpr(LB)
        self.stamp()
        self.wait_flags("s_lshl_b32 s%d, s%d, 6\n s_add_u32 s%d, s%d, 0x%x" % (T0, S_I, T0, T0, WS_FH),
                        "s_mov_b32 s%d, 0xffffff\n s_cmp_eq_u32 s%d, 0\n s_cselect_b32 s%d, 0xffff00, s%d\n"
                        "s_cmp_eq_u32 s%d, 31\n s_cselect_b32 s%d, 0xffff, s%d\n s_mov_b32 s%d, 0"
                        % (T2, S_I, T2, T2, S_I, T2, T2, T3), v + 8)
        self.stamp()
        toks = self.act_dma64(WS_G)
        ACC, FR, AD = v, v + 16, v + 32
        for k in range(16):
            a("v_mov_b32 v%d, 0" % (ACC + k))
        a("s_lshl_b32 s%d, s%d, 11" % (T0, S_WM))
        a("v_add_u32 v%d, s%d, v%d" % (AD, T0, V_L16))
        if LA:
            a("v_add_u32 v%d, %d, v%d" % (AD, LA, AD))

        def sync(ks):
            if ks % 4 == 0:
                a.vm_wait(toks[ks + 3])
                self.barrier()

        def reads(ks):
            t = None
            for mtp in range(2):
                t = a.ds("ds_read_b128 %s, v%d offset:%d" % (vr(FR + (ks & 1) * 8 + mtp * 4, 4), AD, ks * 4096 + mtp * 1024))
            return t
        sync(0)
        tok = reads(0)
        for ks in range(16):
            nxt = None
            if ks < 15:
                sync(ks + 1)
                nxt = reads(ks + 1)
            a.ds_wait(tok)
            for mtp in range(2):
                for ntp in range(2):
                    acc = vr(ACC + (mtp * 2 + ntp) * 4, 4)
                    a("v_mfma_f32_16x16x32_bf16 %s, %s, %s, %s" % (acc, ar((ntp * 16 + ks) * 4, 4), vr(FR + (ks & 1) * 8 + mtp * 4, 4), acc))
            tok = nxt
        t = v + 34
        P = v + 40
        for mtp in range(2):
            for ntp in range(2):
                b = (mtp * 2 + ntp) * 2
                x = ACC + (mtp * 2 + ntp) * 4
                for d in range(2):
                    a("v_lshlrev_b32 v%d, 16, v%d" % (t, V_XN + b + d))
                    a("v_and_b32 v%d, 0xffff0000, v%d" % (t + 1, V_XN + b + d))
                    a("v_add_f32 v%d, v%d, v%d" % (t, t, x + 2 * d))
                    a("v_add_f32 v%d, v%d, v%d" % (t + 1, t + 1, x + 2 * d + 1))
                    a("v_cvt_pk_bf16_f32 v%d, v%d, v%d" % (V_X1 + b + d, t, t + 1))
        SS = v + 48
        for mtp in range(2):
            a("v_mov_b32 v%d, 0" % (SS + 2 * mtp))
            a("v_mov_b32 v%d, 0" % (SS + 2 * mtp + 1))
        for k in range(4):
            for mtp in range(2):
                x = V_X1 + 4 * mtp + k
                a("v_dot2_f32_bf16 v%d, v%d, v%d, v%d" % (SS + 2 * mtp, x, V_ONES, SS + 2 * mtp))
                a("v_dot2_f32_bf16 v%d, v%d, v%d, v%d" % (SS + 2 * mtp + 1, x, x, SS + 2 * mtp + 1))
        for swap in ("v_permlane32_swap_b32", "v_permlane16_swap_b32"):
            for k in range(4):
                a("v_mov_b32 v%d, v%d" % (SS + 4 + k, SS + k))
            for k in range(4):
                a("%s v%d, v%d" % (swap, SS + k, SS + 4 + k))
            for k in range(4):
                a("v_add_f32 v%d, v%d, v%d" % (SS + k, SS + k, SS + 4 + k))
        a("v_cmp_eq_u32 vcc, 1, v%d" % V_G)
        a("v_cndmask_b32 v%d, v%d, v%d, vcc" % (SS, SS, SS + 2))
        a("v_cndmask_b32 v%d, v%d, v%d, vcc" % (SS + 1, SS + 1, SS + 3))
        a("s_lshl_b32 s%d, s%d, 13" % (T0, S_I))
        a("s_lshl_b32 s%d, s%d, 1" % (T1, S_J))
        a("s_add_u32 s%d, s%d, s%d" % (T1, T1, S_WN))
        a("s_lshl_b32 s%d, s%d, 9" % (T2, T1))
        a("s_add_u32 s%d, s%d, s%d" % (T0, T0, T2))
        a("s_lshl_b32 s%d, s%d, 8" % (T2, S_WM))
        a("s_add_u32 s%d, s%d, s%d" % (T0, T0, T2))
        a("s_add_u32 s%d, s%d, 0x%x" % (T0, T0, WS_ST))
        a("v_lshlrev_b32 v%d, 3, v%d" % (SS + 4, V_LANE))
        a("s_mov_b32 exec_hi, 0")
        a.vm("buffer_store_dwordx2 %s, v%d, %s, s%d offen sc0 sc1" % (vr(SS, 2), SS + 4, srd(R_WS), T0))
        a("s_mov_b64 exec, -1")
        a("s_lshl_b32 s%d, s%d, 16" % (T0, S_I))
        a("s_lshl_b32 s%d, s%d, 12" % (T1, T1))
        a("s_add_u32 s%d, s%d, s%d" % (T0, T0, T1))
        a("s_lshl_b32 s%d, s%d, 11" % (T1, S_WM))
        a("s_add_u32 s%d, s%d, s%d" % (T0, T0, T1))
        a("s_add_u32 s%d, s%d, 0x%x" % (T0, T0, WS_X1))
        for mtp in range(2):
            for k in range(4):
                a("v_mov_b32 v%d, v%d" % (P + 4 * mtp + k, V_X1 + 4 * mtp + k))
            self.to_frag(P + 4 * mtp)
            a.vm("buffer_store_dwordx4 %s, v%d, %s, s%d offen offset:%d sc0 sc1" % (vr(P + 4 * mtp, 4), V_L16, srd(R_WS), T0, 1024 * mtp))

    def signal_x1(self):
        self.signal("s_lshl_b32 s%d, s%d, 6\n s_lshl_b32 s%d, s%d, 3\n s_add_u32 s%d, s%d, s%d\n s_add_u32 s%d, s%d, 0x%x"
                    % (T0, S_I, T1, S_J, T0, T0, T1, T0, T0, WS_FX1))

    def w3_stage(self):
        a = self.a
        v = V_T
        vw = v + 104
        self.w_voff(vw, 3584)
        a("s_mul_i32 s%d, s%d, 448" % (T4, S_J))
        a("s_and_b32 s%d, s%d, 1" % (T5, S_J))
        a("s_lshl_b32 s%d, s%d, 6" % (T6, T5))
        a("s_sub_u32 s%d, s%d, s%d" % (T4, T4, T6))
        a("s_mul_i32 s%d, s%d, %d" % (T6, S_W, 8 * 3584))
        a("s_add_u32 s%d, s%d, s%d" % (T4, T4, T6))
        a("s_lshl_b32 s%d, s%d, 10" % (T6, S_W))

        def issue(p):
            slot = LB + (p & 1) * 32768
            t = None
            for panel in range(4):
                for rr in range(2):
                    a("s_add_u32 s%d, s%d, %d" % (T2, T4, panel * 128 + (64 * p + 32 * rr) * 3584))
                    a("s_add_u32 s%d, s%d, %d" % (T3, T6, slot + panel * 8192 + rr * 4096))
                    t = self.dma(vw, R_W3, "s%d" % T2, "s%d" % T3)
            return t
        self.tr_rowpart(v)
        for u in range(4):
            if u < 3:
                a("s_mul_i32 s%d, s%d, 3" % (T1, S_W))
                a("s_add_u32 s%d, s%d, %d" % (T1, T1, u))
            else:
                a("s_add_u32 s%d, s%d, 12" % (T1, S_WM))
            a("s_lshl_b32 s%d, s%d, 1" % (T2, T5))
            a("s_add_u32 s%d, s%d, s%d" % (T1, T1, T2))
            a("s_lshr_b32 s%d, s%d, 2" % (T2, T1))
            a("s_lshl_b32 s%d, s%d, 13" % (T2, T2))
            a("s_add_u32 s%d, s%d, %d" % (T2, T2, LB))
            a("s_and_b32 s%d, s%d, 3" % (T1, T1))
            self.tr_addr(v + 4 + u, v, T1, "s%d" % T2)
        toks = {0: issue(0), 1: issue(1)}
        for p in range(8):
            a.vm_wait(toks[p])
            self.barrier()
            for kk in range(2):
                for u in range(4):
                    for h in range(2):
                        a.ds("ds_read_b64_tr_b16 %s, v%d offset:%d" % (ar((u * 16 + 2 * p + kk) * 4 + 2 * h, 2), v + 4 + u,
                                                                      (p & 1) * 32768 + kk * 4096 + h * 512))
            a.ds_drain()
            if p + 2 < 8:
                self.barrier()
                toks[p + 2] = issue(p + 2)

    def g3(self):
        a = self.a
        v = V_T
        self.w3_stage()
        CS = v
        for k in range(16):
            a("v_mov_b32 v%d, 0" % (CS + k))
        for ks in range(16):
            for u in range(4):
                a("v_mfma_f32_16x16x32_bf16 %s, %s, %s, %s" % (vr(CS + 4 * u, 4), ar((u * 16 + ks) * 4, 4), vr(V_ONES, 4), vr(CS + 4 * u, 4)))
        self.stamp()
        self.wait_flags("s_lshl_b32 s%d, s%d, 6\n s_add_u32 s%d, s%d, 0x%x" % (T0, S_I, T0, T0, WS_FX1),
                        "s_mov_b32 s%d, 0xff\n s_mov_b32 s%d, 0" % (T2, T3), v + 120)
        self.stamp()
        toks = self.act_dma64(WS_X1)
        SP = v + 16
        AD = v + 120
        a("v_lshlrev_b32 v%d, 11, v%d" % (AD, V_G))
        a("v_lshl_add_u32 v%d, v%d, 3, v%d" % (AD, V_C, AD))
        a("s_lshl_b32 s%d, s%d, 13" % (T0, S_I))
        a("s_add_u32 s%d, s%d, 0x%x" % (T0, T0, WS_ST))
        for mt in range(4):
            for pp in range(4):
                tst = a.vm("buffer_load_dwordx2 %s, v%d, %s, s%d offen offset:%d sc1" % (vr(SP + (mt * 4 + pp) * 2, 2), AD, srd(R_WS), T0, pp * 512 + mt * 128))
        ACC = v + 48
        FR = v + 104
        for k in range(56):
            a("v_mov_b32 v%d, 0" % (ACC + k))
        AD = v + 136
        a("v_mov_b32 v%d, v%d" % (AD, V_L16))
        if LA:
            a("v_add_u32 v%d, %d, v%d" % (AD, LA, AD))
        FS = v + 140
        a("s_lshl_b32 s%d, s%d, 11" % (T0, S_WN))
        a("v_add_u32 v%d, s%d, v%d" % (AD + 1, T0, AD))

        def sync(ks):
            if ks % 4 == 0:
                a.vm_wait(toks[ks + 3])
                self.barrier()

        def reads(ks):
            t = None
            for mt in range(4):
                t = a.ds("ds_read_b128 %s, v%d offset:%d" % (vr(FR + (ks & 1) * 16 + mt * 4, 4), AD, ks * 4096 + mt * 1024))
            for q in range(2):
                t = a.ds("ds_read_b128 %s, v%d offset:%d" % (vr(FS + (ks & 1) * 8 + q * 4, 4), AD + 1, ks * 4096 + q * 1024))
            return t
        sync(0)
        tok = reads(0)
        for ks in range(16):
            nxt = None
            if ks < 15:
                sync(ks + 1)
                nxt = reads(ks + 1)
            a.ds_wait(tok)
            for mt in range(4):
                for u in range(3):
                    acc = vr(ACC + (u * 4 + mt) * 4, 4)
                    a("v_mfma_f32_16x16x32_bf16 %s, %s, %s, %s" % (acc, ar((u * 16 + ks) * 4, 4), vr(FR + (ks & 1) * 16 + mt * 4, 4), acc))
            for q in range(2):
                acc = vr(ACC + (12 + q) * 4, 4)
                a("v_mfma_f32_16x16x32_bf16 %s, %s, %s, %s" % (acc, ar((3 * 16 + ks) * 4, 4), vr(FS + (ks & 1) * 8 + q * 4, 4), acc))
            tok = nxt
        self.stamp()
        a.vm_wait(tst)
        for mt in range(4):
            b = SP + mt * 8
            for k in range(2):
                a("v_add_f32 v%d, v%d, v%d" % (b + k, b + k, b + 2 + k))
                a("v_add_f32 v%d, v%d, v%d" % (b + 4 + k, b + 4 + k, b + 6 + k))
                a("v_add_f32 v%d, v%d, v%d" % (b + k, b + k, b + 4 + k))
        ST = FR
        for mt in range(4):
            a("v_mov_b32 v%d, v%d" % (ST + 2 * mt, SP + mt * 8))
            a("v_mov_b32 v%d, v%d" % (ST + 2 * mt + 1, SP + mt * 8 + 1))
        for swap in ("v_permlane32_swap_b32", "v_permlane16_swap_b32"):
            for k in range(8):
                a("v_mov_b32 v%d, v%d" % (ST + 8 + k, ST + k))
            for k in range(8):
                a("%s v%d, v%d" % (swap, ST + k, ST + 8 + k))
            for k in range(8):
                a("v_add_f32 v%d, v%d, v%d" % (ST + k, ST + k, ST + 8 + k))
        KK = SP
        for mt in range(4):
            m, c1, c2, sg = KK + 4 * mt, KK + 4 * mt + 1, KK + 4 * mt + 2, KK + 4 * mt + 3
            t = ST + 8
            a("v_mul_f32 v%d, %s, v%d" % (m, f32hex(1.0 / 512), ST + 2 * mt))
            a("v_mul_f32 v%d, %s, v%d" % (t, f32hex(1.0 / 512), ST + 2 * mt + 1))
            a("v_fma_f32 v%d, -v%d, v%d, v%d" % (t, m, m, t))
            a("v_max_f32 v%d, 0, v%d" % (t, t))
            a("v_add_f32 v%d, %s, v%d" % (t, f32hex(1e-5), t))
            a("v_rsq_f32 v%d, v%d" % (t + 1, t))
            a("v_sqrt_f32 v%d, v%d" % (sg, t))
            a("v_mul_f32 v%d, %s, v%d" % (c1, f32hex(GELU_C1), t + 1))
            a("v_mul_f32 v%d, v%d, v%d" % (c2, t + 1, t + 1))
            a("v_mul_f32 v%d, v%d, v%d" % (c2, c2, t + 1))
            a("v_mul_f32 v%d, %s, v%d" % (c2, f32hex(GELU_C2), c2))
        KS = KK + 16
        l0, l1 = a.label("g3k0"), a.label("g3k1")
        a("s_cmp_lg_u32 s%d, 0" % S_WN)
        a("s_cbranch_scc1 %s" % l0)
        for k in range(8):
            a("v_mov_b32 v%d, v%d" % (KS + k, KK + k))
        a("s_branch %s" % l1)
        a("%s:" % l0)
        for k in range(8):
            a("v_mov_b32 v%d, v%d" % (KS + k, KK + 8 + k))
        a("%s:" % l1)
        TMP = FR
        P = FR + 16
        a("s_mul_i32 s%d, s%d, 229376" % (T4, S_I))
        a("s_mul_i32 s%d, s%d, %d" % (T5, S_J, 7 * 4096))
        a("s_add_u32 s%d, s%d, s%d" % (T4, T4, T5))
        a("s_add_u32 s%d, s%d, 0x%x" % (T4, T4, WS_H3))

        def tile_gelu(x, u, k4):
            regs = []
            for r in range(4):
                a("v_fma_f32 v%d, -v%d, v%d, v%d" % (x + r, k4, CS + 4 * u + r, x + r))
                regs.append(x + r)
            return regs
        for par in range(2):
            lab = a.label("g3e")
            if par == 0:
                l_odd, l_join = a.label("g3odd"), a.label("g3join")
                a("s_cmp_lg_u32 s%d, 0" % S_WN)
                a("s_cbranch_scc1 %s" % l_odd)
            else:
                a("%s:" % l_odd)
            pair = (0, 1) if par == 0 else (1, 2)
            single = 2 if par == 0 else 0
            a("s_mul_i32 s%d, s%d, 3" % (T0, S_W))
            a("s_add_u32 s%d, s%d, %d" % (T1, T0, pair[0]))
            a("s_lshr_b32 s%d, s%d, 1" % (T1, T1))
            a("s_lshl_b32 s%d, s%d, 12" % (T1, T1))
            a("s_add_u32 s%d, s%d, s%d" % (T1, T1, T4))
            a("s_add_u32 s%d, s%d, %d" % (T2, T0, single))
            a("s_lshr_b32 s%d, s%d, 1" % (T2, T2))
            a("s_lshl_b32 s%d, s%d, 12" % (T2, T2))
            a("s_add_u32 s%d, s%d, s%d" % (T2, T2, T4))
            if par == 1:
                a("s_add_u32 s%d, s%d, 512" % (T2, T2))
            for mt in range(4):
                k4 = KK + 4 * mt
                regs = []
                for u in range(3):
                    regs += tile_gelu(ACC + (u * 4 + mt) * 4, u, k4)
                self.gelu_elems(regs, k4 + 1, k4 + 2, k4 + 3, TMP)
                for q, u in enumerate(pair):
                    x = ACC + (u * 4 + mt) * 4
                    a("v_cvt_pk_bf16_f32 v%d, v%d, v%d" % (P + 2 * q, x, x + 1))
                    a("v_cvt_pk_bf16_f32 v%d, v%d, v%d" % (P + 2 * q + 1, x + 2, x + 3))
                x = ACC + (single * 4 + mt) * 4
                a("v_cvt_pk_bf16_f32 v%d, v%d, v%d" % (P + 4, x, x + 1))
                a("v_cvt_pk_bf16_f32 v%d, v%d, v%d" % (P + 5, x + 2, x + 3))
                self.to_frag(P)
                self.to_frag(P + 4)
                a.vm("buffer_store_dwordx4 %s, v%d, %s, s%d offen offset:%d sc0 sc1" % (vr(P, 4), V_L16, srd(R_WS), T1, 1024 * mt))
                a("s_mov_b32 exec_hi, 0")
                a.vm("buffer_store_dwordx4 %s, v%d, %s, s%d offen offset:%d sc0 sc1" % (vr(P + 4, 4), V_L16, srd(R_WS), T2, 1024 * mt))
                a("s_mov_b64 exec, -1")
            if par == 0:
                a("s_branch %s" % l_join)
                a.vm_seq -= 8
            else:
                a("%s:" % l_join)
        a("s_lshl_b32 s%d, s%d, 9" % (T1, S_WM))
        a("s_lshl_b32 s%d, s%d, 11" % (T2, S_WN))
        a("s_add_u32 s%d, s%d, s%d" % (T1, T1, T2))
        a("s_add_u32 s%d, s%d, s%d" % (T1, T1, T4))
        a("s_add_u32 s%d, s%d, %d" % (T1, T1, 6 * 4096))
        for q in range(2):
            x = ACC + (12 + q) * 4
            k4 = KS + 4 * q
            regs = tile_gelu(x, 3, k4)
            self.gelu_elems(regs, k4 + 1, k4 + 2, k4 + 3, TMP)
            a("v_cvt_pk_bf16_f32 v%d, v%d, v%d" % (P + 4 * q, x, x + 1))
            a("v_cvt_pk_bf16_f32 v%d, v%d, v%d" % (P + 4 * q + 1, x + 2, x + 3))
            self.to_frag(P + 4 * q)
            a("s_mov_b32 exec_hi, 0")
            a.vm("buffer_store_dwordx4 %s, v%d, %s, s%d offen offset:%d sc0 sc1" % (vr(P + 4 * q, 4), V_L16, srd(R_WS), T1, 1024 * q))
            a("s_mov_b64 exec, -1")

    def signal_h3(self):
        self.signal("s_lshl_b32 s%d, s%d, 6\n s_lshl_b32 s%d, s%d, 3\n s_add_u32 s%d, s%d, s%d\n s_add_u32 s%d, s%d, 0x%x"
                    % (T0, S_I, T1, S_J, T0, T0, T1, T0, T0, WS_FH3))

    def w4_stage(self):
        a = self.a
        v = V_T
        vw = v + 104
        self.w_voff(vw, 1024)
        a("s_lshl_b32 s%d, s%d, 7" % (T4, S_J))
        a("s_lshl_b32 s%d, s%d, 13" % (T6, S_W))
        a("s_add_u32 s%d, s%d, s%d" % (T4, T4, T6))
        a("s_lshl_b32 s%d, s%d, 10" % (T6, S_W))

        def issue(p):
            slot = LB + (p & 1) * 32768
            t = None
            for half in range(2):
                for rr in range(4):
                    a("s_add_u32 s%d, s%d, %d" % (T2, T4, (896 * half + 128 * p + 32 * rr) * 1024))
                    a("s_add_u32 s%d, s%d, %d" % (T3, T6, slot + half * 16384 + rr * 4096))
                    t = self.dma(vw, R_W4, "s%d" % T2, "s%d" % T3)
            return t
        self.tr_rowpart(v)
        for ntp in range(2):
            a("s_lshl_b32 s%d, s%d, 1" % (T1, S_WN))
            a("s_add_u32 s%d, s%d, %d" % (T1, T1, ntp))
            a("s_lshl_b32 s%d, s%d, 14" % (T2, S_WM))
            a("s_add_u32 s%d, s%d, %d" % (T2, T2, LB))
            self.tr_addr(v + 4 + ntp, v, T1, "s%d" % T2)
        toks = {0: issue(0), 1: issue(1)}
        for p in range(7):
            a.vm_wait(toks[p])
            self.barrier()
            for kk in range(4):
                for ntp in range(2):
                    for h in range(2):
                        a.ds("ds_read_b64_tr_b16 %s, v%d offset:%d" % (ar((ntp * 28 + 4 * p + kk) * 4 + 2 * h, 2), v + 4 + ntp,
                                                                      (p & 1) * 32768 + kk * 4096 + h * 512))
            a.ds_drain()
            if p + 2 < 7:
                self.barrier()
                toks[p + 2] = issue(p + 2)

    def g4(self):
        a = self.a
        v = V_T
        self.w4_stage()
        self.barrier()
        self.stamp()
        self.wait_flags("s_lshl_b32 s%d, s%d, 6\n s_add_u32 s%d, s%d, 0x%x" % (T0, S_I, T0, T0, WS_FH3),
                        "s_mov_b32 s%d, 0xff\n s_mov_b32 s%d, 0" % (T2, T3), v + 120)
        self.stamp()
        a("s_mul_i32 s%d, s%d, 229376" % (T4, S_I))
        a("s_mul_i32 s%d, s%d, %d" % (T5, S_WM, 28 * 4096))
        a("s_add_u32 s%d, s%d, s%d" % (T4, T4, T5))
        a("s_lshl_b32 s%d, s%d, 13" % (T5, S_WN))
        a("s_add_u32 s%d, s%d, s%d" % (T4, T4, T5))
        a("s_add_u32 s%d, s%d, 0x%x" % (T4, T4, WS_H3))
        a("s_lshl_b32 s%d, s%d, 14" % (T6, S_WM))
        a("s_add_u32 s%d, s%d, s%d" % (T6, T6, T5))

        def issue(q):
            t = None
            for k in range(8):
                a("s_add_u32 s%d, s%d, %d" % (T2, T4, q * 16384 + k * 1024))
                a("s_add_u32 s%d, s%d, %d" % (T3, T6, LA + (q & 3) * 32768 + k * 1024))
                t = self.dma(V_L16, R_WS, "s%d" % T2, "s%d" % T3, "sc1")
            return t
        toks = {q: issue(q) for q in range(4)}
        ACC = v
        FR = v + 32
        AD = v + 64
        for k in range(32):
            a("v_mov_b32 v%d, 0" % (ACC + k))
        a("s_lshl_b32 s%d, s%d, 14" % (T0, S_WM))
        a("v_add_u32 v%d, s%d, v%d" % (AD, T0, V_L16))
        if LA:
            a("v_add_u32 v%d, %d, v%d" % (AD, LA, AD))
        a("v_add_u32 v%d, 0x10000, v%d" % (AD + 1, AD))

        def sync(ksl):
            if ksl % 4 == 0:
                q = ksl // 4
                a.vm_wait(toks[q])
                self.barrier()
                if q >= 1 and q + 3 < 7:
                    toks[q + 3] = issue(q + 3)

        def reads(ksl):
            q, kk = ksl // 4, ksl % 4
            s = q & 3
            t = None
            for mt in range(4):
                t = a.ds("ds_read_b128 %s, v%d offset:%d" % (vr(FR + (ksl & 1) * 16 + mt * 4, 4), AD + (s >> 1), (s & 1) * 32768 + kk * 4096 + mt * 1024))
            return t
        sync(0)
        tok = reads(0)
        for ksl in range(28):
            nxt = None
            if ksl < 27:
                if (ksl + 1) % 4 == 0:
                    a.ds_wait(tok)
                sync(ksl + 1)
                nxt = reads(ksl + 1)
            a.ds_wait(tok)
            for mt in range(4):
                for ntp in range(2):
                    acc = vr(ACC + (mt * 2 + ntp) * 4, 4)
                    a("v_mfma_f32_16x16x32_bf16 %s, %s, %s, %s" % (acc, ar((ntp * 28 + ksl) * 4, 4), vr(FR + (ksl & 1) * 16 + mt * 4, 4), acc))
            tok = nxt
        self.stamp()
        self.wait_flags("s_lshl_b32 s%d, s%d, 8\n s_add_u32 s%d, s%d, 0x%x" % (T0, S_J, T0, T0, WS_FY),
                        "s_mov_b32 s%d, -1\n s_mov_b32 s%d, 0" % (T2, T3), v + 120)
        YL = LA
        vy = v + 70
        a("v_lshrrev_b32 v%d, 3, v%d" % (vy, V_LANE))
        a("v_lshlrev_b32 v%d, 12, v%d" % (vy, vy))
        a("v_and_b32 v%d, 7, v%d" % (vy + 1, V_LANE))
        a("v_lshl_add_u32 v%d, v%d, 4, v%d" % (vy, vy + 1, vy))
        a("s_lshl_b32 s%d, s%d, 18" % (T0, S_J))
        a("s_lshl_b32 s%d, s%d, 7" % (T1, S_I))
        a("s_add_u32 s%d, s%d, s%d" % (T0, T0, T1))
        a("s_lshl_b32 s%d, s%d, 15" % (T1, S_W))
        a("s_add_u32 s%d, s%d, s%d" % (T0, T0, T1))
        a("s_add_u32 s%d, s%d, 0x%x" % (T0, T0, WS_YT))
        a("s_lshl_b32 s%d, s%d, 10" % (T1, S_W))
        a("s_add_u32 s%d, s%d, %d" % (T1, T1, YL))
        self.dma(vy, R_WS, "s%d" % T0, "s%d" % T1, "sc1")
        a("s_add_u32 s%d, s%d, 0x20000" % (T0, T0))
        a("s_add_u32 s%d, s%d, 4096" % (T1, T1))
        ty = self.dma(vy, R_WS, "s%d" % T0, "s%d" % T1, "sc1")
        VR = v + 66
        a("s_lshl_b32 s%d, s%d, 12" % (T0, S_W))
        a("s_add_u32 s%d, s%d, %d" % (T0, T0, LC_RED))
        a("v_add_u32 v%d, s%d, v%d" % (VR, T0, V_L16))
        a("s_xor_b32 s%d, s%d, 2" % (T1, S_W))
        a("s_lshl_b32 s%d, s%d, 12" % (T1, T1))
        a("s_add_u32 s%d, s%d, %d" % (T1, T1, LC_RED))
        a("v_add_u32 v%d, s%d, v%d" % (VR + 1, T1, V_L16))
        KEEP = v + 32
        l0, l1 = a.label("g4x0"), a.label("g4x1")
        a("s_cmp_lg_u32 s%d, 0" % S_WM)
        a("s_cbranch_scc1 %s" % l0)
        for q in range(4):
            a("ds_write_b128 v%d, %s offset:%d" % (VR, vr(ACC + 16 + 4 * q, 4), 1024 * q))
        for k in range(16):
            a("v_mov_b32 v%d, v%d" % (KEEP + k, ACC + k))
        a("s_branch %s" % l1)
        a("%s:" % l0)
        for q in range(4):
            a("ds_write_b128 v%d, %s offset:%d" % (VR, vr(ACC + 4 * q, 4), 1024 * q))
        for k in range(16):
            a("v_mov_b32 v%d, v%d" % (KEEP + k, ACC + 16 + k))
        a("%s:" % l1)
        a("s_waitcnt lgkmcnt(0)")
        a.vm_wait(ty)
        self.barrier()
        OT = v
        for q in range(4):
            a.ds("ds_read_b128 %s, v%d offset:%d" % (vr(OT + 4 * q, 4), VR + 1, 1024 * q))
        YV = v + 48
        a("v_lshrrev_b32 v%d, 2, v%d" % (VR + 2, V_C))
        a("v_lshl_add_u32 v%d, v%d, 2, v%d" % (VR + 2, V_G, VR + 2))
        a("v_lshlrev_b32 v%d, 7, v%d" % (VR + 2, VR + 2))
        a("v_and_b32 v%d, 3, v%d" % (VR + 3, V_C))
        a("v_lshl_add_u32 v%d, v%d, 3, v%d" % (VR + 2, VR + 3, VR + 2))
        a("s_lshl_b32 s%d, s%d, 12" % (T0, S_WN))
        a("s_lshl_b32 s%d, s%d, 6" % (T1, S_WM))
        a("s_add_u32 s%d, s%d, s%d" % (T0, T0, T1))
        a("s_add_u32 s%d, s%d, %d" % (T0, T0, YL))
        a("v_add_u32 v%d, s%d, v%d" % (VR + 2, T0, VR + 2))
        for mtp in range(2):
            for ntp in range(2):
                a.ds("ds_read_b64_tr_b16 %s, v%d offset:%d" % (vr(YV + (mtp * 2 + ntp) * 2, 2), VR + 2, ntp * 2048 + mtp * 32))
        a.ds_drain()
        t = v + 56
        P = v + 72
        for mtp in range(2):
            for ntp in range(2):
                b = (mtp * 2 + ntp) * 2
                x = KEEP + (mtp * 2 + ntp) * 4
                o = OT + (mtp * 2 + ntp) * 4
                for d in range(2):
                    for hi in range(2):
                        e = 2 * d + hi

                        def unpack(dst, src):
                            if hi:
                                a("v_and_b32 v%d, 0xffff0000, v%d" % (dst, src))
                            else:
                                a("v_lshlrev_b32 v%d, 16, v%d" % (dst, src))
                        unpack(t, V_X + b + d)
                        unpack(t + 1, V_XN + b + d)
                        unpack(t + 2, V_X1 + b + d)
                        unpack(t + 3, YV + b + d)
                        a("v_add_f32 v%d, v%d, v%d" % (x + e, x + e, o + e))
                        a("v_add_f32 v%d, v%d, v%d" % (x + e, x + e, t + 2))
                        a("v_fma_f32 v%d, v%d, v%d, v%d" % (t, t + 1, t + 3, t))
                        a("v_add_f32 v%d, v%d, v%d" % (x + e, x + e, t))
                    a("v_cvt_pk_bf16_f32 v%d, v%d, v%d" % (P + 4 * mtp + 2 * ntp + d, x + 2 * d, x + 2 * d + 1))
            self.to_frag(P + 4 * mtp)
        a("s_lshl_b32 s%d, s%d, 16" % (T0, S_I))
        a("s_lshl_b32 s%d, s%d, 15" % (T1, S_WM))
        a("s_add_u32 s%d, s%d, s%d" % (T0, T0, T1))
        a("s_lshl_b32 s%d, s%d, 7" % (T1, S_J))
        a("s_add_u32 s%d, s%d, s%d" % (T0, T0, T1))
        a("s_lshl_b32 s%d, s%d, 6" % (T1, S_WN))
        a("s_add_u32 s%d, s%d, s%d" % (T0, T0, T1))
        a("v_lshlrev_b32 v%d, 10, v%d" % (VR, V_C))
        a("v_lshl_add_u32 v%d, v%d, 4, v%d" % (VR, V_G, VR))
        a("s_add_u32 s%d, s%d, 0x4000" % (T1, T0))
        a.vm("buffer_store_dwordx4 %s, v%d, %s, s%d offen" % (vr(P, 4), VR, srd(R_OUT), T0))
        a.vm("buffer_store_dwordx4 %s, v%d, %s, s%d offen" % (vr(P + 4, 4), VR, srd(R_OUT), T1))

    def epilogue(self):
        a = self.a
        skip = a.label("ep")
        a("s_cmp_lg_u32 s2, 0")
        a("s_cbranch_scc1 %s" % skip)
        a("s_cmp_lg_u32 s%d, 0" % S_W)
        a("s_cbranch_scc1 %s" % skip)
        a("v_mov_b32 v%d, s%d" % (V_T, S_E))
        a("v_mov_b32 v%d, %d" % (V_T + 1, WS_EPOCH))
        a("s_mov_b64 exec, 1")
        a("buffer_store_dword v%d, v%d, %s, 0 offen sc0 sc1" % (V_T, V_T + 1, srd(R_WS)))
        a("s_mov_b64 exec, -1")
        a("%s:" % skip)
        if self.diag:
            self.stamp()
            skip = a.label("dg")
            a("s_cmp_lg_u32 s%d, 0" % S_W)
            a("s_cbranch_scc1 %s" % skip)
            for k in range(16):
                a("v_mov_b32 v%d, s%d" % (V_T + k, S_STAMP + k if k < self.nstamp else S_TO))
            a("s_lshl_b32 s%d, s2, 6" % T0)
            a("s_add_u32 s%d, s%d, 0x%x" % (T0, T0, WS_DIAG))
            a("v_mov_b32 v%d, 0" % (V_T + 16))
            a("s_mov_b64 exec, 1")
            for q in range(4):
                a("buffer_store_dwordx4 %s, v%d, %s, s%d offen offset:%d" % (vr(V_T + 4 * q, 4), V_T + 16, srd(R_WS), T0, 16 * q))
            a("s_mov_b64 exec, -1")
            a("%s:" % skip)

    def build(self):
        a = self.a
        self.prologue()
        self.phase_kv()
        self.g1_issue()
        self.phase_kv_compute()
        self.signal_kv()
        self.stamp()
        self.w64_to_agpr(LB)
        self.g1_stats()
        self.barrier()
        self.g1_main()
        self.signal_h()
        self.stamp()
        self.conv()
        self.signal_y()
        self.stamp()
        self.g2()
        self.signal_x1()
        self.stamp()
        self.g3()
        self.signal_h3()
        self.stamp()
        self.g4()
        self.epilogue()
        a("L_end:")
        a("s_endpgm")
        body = a.finish()
        head = open(__file__.replace("gen.py", "header.txt")).read()
        txt = head
        txt += "; @launch grid=(256,1,1) block=(256,1,1) lds=%d\n" % LDS_SIZE
        txt += '.amdgcn_target "amdgcn-amd-amdhsa--gfx950"\n.text\n.globl %s\n.p2align 8\n.type %s,@function\n%s:\n' % (NAME, NAME, NAME)
        txt += body
        txt += ('.section .rodata,"a"\n.p2align 6\n.amdhsa_kernel %s\n  .amdhsa_next_free_vgpr 512\n  .amdhsa_next_free_sgpr 102\n'
                '  .amdhsa_accum_offset 256\n  .amdhsa_group_segment_fixed_size 0\n  .amdhsa_kernarg_size 112\n'
                '  .amdhsa_user_sgpr_count 2\n  .amdhsa_user_sgpr_kernarg_segment_ptr 1\n  .amdhsa_system_sgpr_workgroup_id_x 1\n'
                '.end_amdhsa_kernel\n' % NAME)
        return txt


if __name__ == "__main__":
    out = sys.argv[1]
    g = Gen(diag=(len(sys.argv) > 2 and sys.argv[2] == "diag"))
    open(out, "w").write(g.build())
    print("wrote", out, "nops inserted:", g.a.nops_inserted, "stamps:", g.nstamp)
```

```python
import numpy as np, sys
from hx import *
asm = HEAD
def kern(name, n, kind, nfill=0):
    s = kstart(name)
    s += """
    s_load_dwordx2 s[4:5], s[0:1], 0
    s_load_dwordx2 s[8:9], s[0:1], 8
    v_and_b32 v1, 63, v0
    v_lshrrev_b32 v2, 6, v0
    s_nop 0
    v_readfirstlane_b32 s14, v2
    s_waitcnt lgkmcnt(0)
    s_mov_b32 s10, 0x7fffffff
    s_mov_b32 s11, 0x20000
    v_lshlrev_b32 v3, 4, v1
    s_lshl_b32 s17, s14, 15
    v_add_u32 v3, s17, v3
    v_lshlrev_b32 v5, 2, v1
    v_add_u32 v5, s17, v5
    v_and_b32 v6, 15, v1
    v_lshlrev_b32 v6, 3, v6
    v_lshrrev_b32 v7, 4, v1
    v_lshlrev_b32 v7, 11, v7
    v_add_u32 v6, v6, v7
    v_add_u32 v6, s17, v6
    s_lshl_b32 s18, s14, 14
    s_mov_b32 s21, 0
    buffer_load_dword v8, v5, s[8:11], 0 offen
    s_waitcnt vmcnt(0)
    s_barrier
    s_memtime s[6:7]
    s_waitcnt lgkmcnt(0)
"""
    for i in range(n):
        if kind == "dma":
            s += "s_add_u32 m0, s18, %d\n s_add_u32 s21, s21, 1024\n buffer_load_dwordx4 v3, s[8:11], s21 offen lds\n" % (1024 * (i % 16))
        elif kind == "dw":
            s += "s_add_u32 s21, s21, 256\n buffer_load_dword v%d, v5, s[8:11], s21 offen\n" % (16 + i % 32)
        elif kind == "dw2s":
            s += "s_add_u32 s21, s21, 128\n buffer_load_dwordx2 v[%d:%d], v6, s[8:11], s21 offen\n" % (16 + 2 * (i % 16), 17 + 2 * (i % 16))
        elif kind == "st":
            s += "s_add_u32 s21, s21, 1024\n buffer_store_dwordx4 v[16:19], v3, s[8:11], s21 offen\n"
        elif kind == "stsc":
            s += "s_add_u32 s21, s21, 1024\n buffer_store_dwordx4 v[16:19], v3, s[8:11], s21 offen sc0 sc1\n"
        for f in range(nfill):
            s += "v_add_f32 v%d, v60, v%d\n" % (50 + f % 8, 50 + f % 8)
    s += """
    s_memtime s[12:13]
    s_waitcnt lgkmcnt(0)
    s_waitcnt vmcnt(0)
    s_memtime s[22:23]
    s_waitcnt lgkmcnt(0)
    s_sub_u32 s12, s12, s6
    s_sub_u32 s22, s22, s6
    v_mov_b32 v4, s12
    v_mov_b32 v5, s22
    v_cmp_eq_u32 vcc, 0, v1
    s_and_saveexec_b64 s[12:13], vcc
    s_lshl_b32 s2, s2, 6
    v_lshlrev_b32 v2, 3, v2
    v_add_u32 v2, s2, v2
    global_store_dwordx2 v2, v[4:5], s[4:5]
    s_endpgm
"""
    return s + kd(name, 128, 40, 128)
cfgs = []
for kind in ("dma", "dw", "dw2s", "st", "stsc"):
    for n in (1, 2, 4, 8, 16, 32):
        cfgs.append((kind, n, 0))
for nf in (4, 8, 12, 16):
    cfgs.append(("dma", 16, nf))
for c in cfgs:
    asm += kern("k_%s_%d_%d" % c, c[1], c[0], c[2])
co = build(asm, 2, "mb9")
m = Module(co)
out = Buf(1 << 16)
src = Buf(64 << 20)
src.fill(0)
for c in cfgs:
    line = "%-5s n=%2d fill=%2d:" % c
    for nw in (1, 4):
        for rep in range(3):
            m.launch("k_%s_%d_%d" % c, (256, 1, 1), (nw * 64, 1, 1), 100 * 1024, [out.ptr, src.ptr]); sync()
        r = out.get(np.uint32, (256, 8, 2)).astype(np.int64)[:, :nw]
        line += "  %dw: issue %5d done %5d |" % (nw, np.median(r[:, :, 0]), np.median(r[:, :, 1]))
    print(line)
```
